```python
import torch

def _softmax(x, axis=-1):
    return torch.softmax(x, dim=axis)
def _gelu(x):
    return torch.nn.functional.gelu(x, approximate="tanh")
def _silu(x):
    return torch.nn.functional.silu(x)
def _sigmoid(x):
    return torch.sigmoid(x)
def _layernorm(x, axis=-1, eps=1e-5):
    m = x.mean(dim=axis, keepdim=True)
    v = x.var(dim=axis, keepdim=True, unbiased=False)
    return (x - m) / torch.sqrt(v + eps)
def _scatter_add(tgt, idx, src, axis=0):
    return tgt.clone().index_add_(axis, idx, src)
def _segment_sum(src, seg, n):
    out = torch.zeros((n,) + src.shape[1:], dtype=src.dtype)
    return out.index_add_(0, seg, src)
def _pad(x, pw):
    flat = tuple(v for pair in reversed(pw) for v in pair)
    return torch.nn.functional.pad(x, flat)

kernel_name = 'gather_scatter__edge_featured_mpnn_egc__graph'

def setup_inputs():

    _w = (lambda a: (lambda t: t.to(torch.bfloat16) if t.is_floating_point() else t)(torch.as_tensor(a)))
    N, deg, D, De = 12500, 64, 64, max(0, 1)
    E = N * deg
    return {
        "x": _w((lambda *s: torch.randn(*s, dtype=torch.bfloat16) * 0.2)(N, D)),
        "e_attr": _w((lambda *s: torch.randn(*s, dtype=torch.bfloat16) * 0.2)(E, De)),
        "src": _w((lambda lo, hi, *s: torch.randint(lo, hi, s))(0, N, E).to(torch.int64)),
        "dst": _w((lambda lo, hi, *s: torch.randint(lo, hi, s))(0, N, E).to(torch.int64)),
        "u_w": _w((lambda *s: torch.randn(*s, dtype=torch.bfloat16) * 0.05)(D, D)),
        "v_w": _w((lambda *s: torch.randn(*s, dtype=torch.bfloat16) * 0.05)(D, D)),
        "g_w": _w((lambda *s: torch.randn(*s, dtype=torch.bfloat16) * 0.2)(2 * D + De, D)),
    }

def reference(x, e_attr, src, dst, u_w, v_w, g_w):
    N, D = x.shape
    g_in = torch.concatenate([x[dst], x[src], e_attr], axis=-1)
    eta = _sigmoid(g_in @ g_w)
    hv = x @ v_w
    msg = eta * hv[src]
    agg = _segment_sum(msg, dst, N)
    return _silu(x @ u_w + agg)
```

```python
import sys
HDR = """; @launch grid=({grid},1,1) block=({block},1,1) lds={lds}
.amdgcn_target "amdgcn-amd-amdhsa--gfx950"
.text
.globl mb_kernel
.p2align 8
.type mb_kernel,@function
mb_kernel:
    s_load_dwordx4 s[4:7], s[0:1], 0
    s_load_dwordx4 s[8:11], s[0:1], 16
    s_waitcnt lgkmcnt(0)
    s_mov_b32 s12, s6
    s_mov_b32 s13, s7
    s_mov_b32 s14, 0x1000000
    s_mov_b32 s15, 0x00020000
"""
TAIL = """
    s_memtime s[22:23]
    s_waitcnt lgkmcnt(0)
    s_sub_u32 s24, s22, s20
    v_lshrrev_b32 v1, 6, v0
    s_mul_i32 s25, s2, {wpb}
    v_add_u32 v1, s25, v1
    v_lshlrev_b32 v1, 2, v1
    v_mov_b32 v2, s24
    v_and_b32 v3, 63, v0
    v_cmp_eq_u32 vcc, 0, v3
    s_and_saveexec_b64 s[26:27], vcc
    buffer_store_dword v2, v1, s[12:15], 0 offen
    s_waitcnt vmcnt(0)
    s_endpgm
.section .rodata,"a"
.p2align 6
.amdhsa_kernel mb_kernel
  .amdhsa_next_free_vgpr {vgpr}
  .amdhsa_next_free_sgpr 102
  .amdhsa_accum_offset {vgpr}
  .amdhsa_group_segment_fixed_size 0
  .amdhsa_kernarg_size 32
  .amdhsa_user_sgpr_count 2
  .amdhsa_user_sgpr_kernarg_segment_ptr 1
  .amdhsa_system_sgpr_workgroup_id_x 1
.end_amdhsa_kernel
"""
def gen(name, body_fn, grid, block, iters=200, vgpr=64, lds=0):
    s = HDR.format(grid=grid, block=block, lds=lds)
    for i in range(4, 60):
        s += f"    v_mov_b32 v{i}, 1.0\n"
    s += "    s_barrier\n    s_memtime s[20:21]\n    s_waitcnt lgkmcnt(0)\n"
    s += f"    s_mov_b32 s30, {iters}\nL_loop:\n"
    s += body_fn()
    s += "    s_sub_u32 s30, s30, 1\n    s_cmp_lg_u32 s30, 0\n    s_cbranch_scc1 L_loop\n"
    s += TAIL.format(wpb=block//64, vgpr=vgpr)
    open(name, "w").write(s)
```

```python
from gen_valu_lib import HDR
TAIL = """
    s_endpgm
.section .rodata,"a"
.p2align 6
.amdhsa_kernel mb_kernel
  .amdhsa_next_free_vgpr 64
  .amdhsa_next_free_sgpr 102
  .amdhsa_accum_offset 64
  .amdhsa_group_segment_fixed_size 0
  .amdhsa_kernarg_size 32
  .amdhsa_user_sgpr_count 2
  .amdhsa_user_sgpr_kernarg_segment_ptr 1
  .amdhsa_system_sgpr_workgroup_id_x 1
.end_amdhsa_kernel
"""
def gen(name, nw, flags, preread, sleep=40, rd=False):
    s = HDR.format(grid=256, block=1024, lds=0)
    s += f"""
    s_memrealtime s[20:21]
    s_mov_b32 s16, s10
    s_mov_b32 s17, s11
    s_mov_b32 s18, 0x4000000
    s_mov_b32 s19, 0x00020000
    s_mul_i32 s3, s2, {nw*16384}
    v_lshlrev_b32 v1, 4, v0
    v_mov_b32 v4, 1
    v_mov_b32 v5, 2
    v_mov_b32 v6, 3
    v_mov_b32 v7, 4
"""
    if preread:
        for i in range(nw):
            s += f"    s_add_u32 s4, s3, {i*16384}\n    buffer_load_dwordx4 v[{8+4*i}:{11+4*i}], v1, s[16:19], s4 offen\n"
        s += "    s_waitcnt vmcnt(0)\n"
    s += "    s_waitcnt lgkmcnt(0)\n    s_memrealtime s[26:27]\n"
    for i in range(sleep):
        s += "    s_sleep 4\n"
    s += "    s_waitcnt lgkmcnt(0)\n    s_memrealtime s[22:23]\n"
    for i in range(nw):
        if rd:
            s += f"    s_add_u32 s4, s3, {i*16384}\n    buffer_load_dwordx4 v[{8+4*i}:{11+4*i}], v1, s[16:19], s4 offen{flags}\n"
        else:
            s += f"    s_add_u32 s4, s3, {i*16384}\n    buffer_store_dwordx4 v[4:7], v1, s[16:19], s4 offen{flags}\n"
    s += """    s_waitcnt vmcnt(0)
    s_barrier
    s_memrealtime s[24:25]
    s_waitcnt lgkmcnt(0)
    v_mov_b32 v8, s20
    v_mov_b32 v9, s26
    v_mov_b32 v10, s22
    v_mov_b32 v11, s24
    s_lshl_b32 s3, s2, 4
    v_mov_b32 v1, s3
    v_cmp_eq_u32 vcc, 0, v0
    s_and_saveexec_b64 s[28:29], vcc
    s_cbranch_execz L_end
    buffer_store_dwordx4 v[8:11], v1, s[12:15], 0 offen
L_end:
"""
    s += TAIL
    open(name, "w").write(s)
names = []
for nw in (1, 2, 4):
    for fl, tag in ((" sc1", "sc1"), (" sc1 nt", "sc1nt"), (" sc0 sc1", "sc01")):
        for pre in (0, 1):
            n = f"w_{nw}_{tag}_p{pre}.s"; gen(n, nw, fl, pre); names.append(n)
    n = f"w_{nw}_rd.s"; gen(n, nw, "", 0, rd=True); names.append(n)
print(" ".join(names))
```

```python
import sys, struct, math

def opt0(name, default):
    r = [a[len(name)+3:] for a in sys.argv if a.startswith("--" + name + "=")]
    return r[0] if r else default
N = 12500; E = 800000
NB = 256; BN = 49
CH = 3200; NCH = 250
NG = 98
T_OFF = 0; REC_OFF = 8 << 20; OFF_OFF = 16 << 20; FR_OFF = 17 << 20
OG = int(opt0("og", "32")); OGL = OG.bit_length() - 1
OFF_GS = 256*OG*4
FR_B = 16384; FR_S = 17408; FR_SIZE = 17408 + 512
LOG2E = math.log2(math.e)
def f32bits(x): return struct.unpack("<I", struct.pack("<f", x))[0]
NEGL = f32bits(-LOG2E)
KLOG = 2.0
POLY = [1.0/math.factorial(k) for k in range(1, 9)]
def opt(name, default):
    r = [a[len(name)+3:] for a in sys.argv if a.startswith("--" + name + "=")]
    return r[0] if r else default
def flag(name): return ("--" + name) in sys.argv

out = []
def A(s): out.append("    " + s)
def L(s): out.append(s + ":")

def srd(r, lo, hi, nrec, add=0):
    if add:
        A(f"s_add_u32 s{r}, s{lo}, 0x{add:x}")
        A(f"s_addc_u32 s{r+1}, s{hi}, 0")
        A(f"s_and_b32 s{r+1}, s{r+1}, 0xffff")
    else:
        A(f"s_mov_b32 s{r}, s{lo}")
        A(f"s_and_b32 s{r+1}, s{hi}, 0xffff")
    A(f"s_mov_b32 s{r+2}, 0x{nrec:x}")
    A(f"s_mov_b32 s{r+3}, 0x20000")

def v(r, n=1):
    return f"v{r}" if n == 1 else f"v[{r}:{r+n-1}]"
def s4(r): return f"s[{r}:{r+3}]"
def s2(r): return f"s[{r}:{r+1}]"

def scan64(x, op="v_add_u32_dpp"):
    for sh in (1, 2, 4, 8):
        A("s_nop 1")
        A(f"{op} v{x}, v{x}, v{x} row_shr:{sh} row_mask:0xf bank_mask:0xf")
    A("s_nop 1")
    A(f"{op} v{x}, v{x}, v{x} row_bcast:15 row_mask:0xa bank_mask:0xf")
    A("s_nop 1")
    A(f"{op} v{x}, v{x}, v{x} row_bcast:31 row_mask:0xc bank_mask:0xf")

DBG = flag("dbg")
def stamp(idx):
    if DBG:
        A("s_memtime s[98:99]")
        A("s_waitcnt lgkmcnt(0)")
        A(f"s_mov_b32 s{86+idx}, s98")
def rstamp(idx):
    if DBG:
        A("s_memrealtime s[98:99]")
        A("s_waitcnt lgkmcnt(0)")
        A(f"s_mov_b32 s{86+idx}, s98")
def dbg_dump(nst, wave_sgpr, lab, wg=0, nw=4, slot0=0, wsh=0, kidx=0):
    if DBG:
        A(f"s_cmp_lg_u32 s{wave_sgpr}, 0")
        A(f"s_cbranch_scc1 {lab}W")
        srd(96, WS_, WS_+1, 1 << 20, (18 << 20) + kidx*65536)
        A("s_getreg_b32 s3, hwreg(HW_REG_XCC_ID)")
        A("s_mov_b64 exec, 1")
        A("v_mov_b32 v4, s3")
        A("s_getreg_b32 s3, hwreg(HW_REG_HW_ID)")
        A("v_mov_b32 v5, s3")
        A("s_lshl_b32 s3, s2, 4")
        A("v_mov_b32 v1, s3")
        A("v_mov_b32 v2, s94")
        A("v_mov_b32 v3, s95")
        A("buffer_store_dwordx4 v[2:5], v1, s[96:99], 0 offen")
        L(lab + "W")
        A(f"s_cmp_lg_u32 s2, {wg}")
        A(f"s_cbranch_scc1 {lab}")
        A(f"s_and_b32 s3, s{wave_sgpr}, {(1<<wsh)-1}")
        A(f"s_cmp_lg_u32 s3, {(1<<wsh)-1}")
        A(f"s_cbranch_scc1 {lab}")
        A(f"s_lshr_b32 s3, s{wave_sgpr}, {wsh}")
        A(f"s_cmp_ge_u32 s3, {nw}")
        A(f"s_cbranch_scc1 {lab}")
        A("s_load_dwordx2 s[98:99], s[0:1], 64")
        A("s_waitcnt lgkmcnt(0)")
        srd(100-4, 98, 99, 256)
        A("s_mov_b64 exec, 1")
        A(f"s_mul_i32 s3, s3, 64")
        A("v_mov_b32 v1, s3")
        for i in range(nst):
            A(f"v_mov_b32 v2, s{86+i}")
            A(f"buffer_store_dword v2, v1, s[96:99], 0 offen offset:{4*i+64*slot0}")
        L(lab)
X_, E_, SRC_, DST_, U_, V_, G_, OUT_, WS_ = 16, 18, 20, 22, 24, 26, 28, 30, 32

def tr_lane_addr(dst, lane, h, tmp):
    A(f"v_bfe_u32 v{dst}, v{lane}, 2, 2")
    A(f"v_lshl_add_u32 v{dst}, v{h}, 3, v{dst}")
    A(f"v_lshlrev_b32 v{dst}, 7, v{dst}")
    A(f"v_and_b32 v{tmp}, 1, v{lane}")
    A(f"v_lshl_add_u32 v{dst}, v{tmp}, 5, v{dst}")
    A(f"v_bfe_u32 v{tmp}, v{lane}, 4, 1")
    A(f"v_lshl_add_u32 v{dst}, v{tmp}, 4, v{dst}")
    A(f"v_bfe_u32 v{tmp}, v{lane}, 1, 1")
    A(f"v_lshl_add_u32 v{dst}, v{tmp}, 3, v{dst}")

K1_LDS = 16384 + 8*4608
SC = " sc1"
def k1():
    out.append(".globl k1_kernel")
    out.append(".p2align 8")
    out.append(".type k1_kernel,@function")
    L("k1_kernel")
    A(f"s_cmp_gt_u32 s2, {NCH+NG}")
    A("s_cbranch_scc1 K1_END")
    stamp(0)
    rstamp(8)
    A("s_load_dwordx16 s[16:31], s[0:1], 0")
    A("s_load_dwordx2 s[32:33], s[0:1], 72")
    A("v_lshrrev_b32 v1, 6, v0")
    A("v_lshlrev_b32 v3, 4, v0")
    A("v_readfirstlane_b32 s7, v1")
    A(f"s_cmp_eq_u32 s2, {NCH+NG}")
    A("s_cbranch_scc1 K1_FRAG")
    GF = flag("gemmfirst")
    if GF:
        A(f"s_cmp_lt_u32 s2, {NG}")
        A("s_cbranch_scc1 K1_GEMM")
        A(f"s_sub_u32 s34, s2, {NG}")
    else:
        A(f"s_cmp_ge_u32 s2, {NCH}")
        A("s_cbranch_scc1 K1_GEMM")
        A(f"s_mov_b32 s34, s2")
    HIST, BASE, STAGE = 0, 1024, 2048
    A("s_cmp_eq_u32 s7, 7")
    A("s_cbranch_scc1 K1_END")
    A("v_and_b32 v1, 0xff, v0")
    A("v_lshlrev_b32 v1, 2, v1")
    A("v_mov_b32 v2, 0")
    A("ds_write_b32 v1, v2")
    A("v_lshlrev_b32 v4, 3, v0")
    A(f"s_mul_i32 s3, s34, {CH*4}")
    A(f"s_add_u32 s4, s3, {CH*2}")
    A(f"s_mul_i32 s5, s34, {CH*2}")
    A(f"s_add_u32 s6, s5, {CH}")
    A(f"v_cmp_gt_u32 vcc, {CH//8}, v0")
    A("s_movk_i32 s10, -49")
    A("v_mov_b32 v5, 1")
    A("s_waitcnt lgkmcnt(0)")
    srd(36, DST_, DST_+1, E*4)
    A("s_mov_b64 s[8:9], vcc")
    A("s_mov_b64 exec, vcc")
    A("buffer_load_dwordx4 v[8:11], v3, s[36:39], s3 offen")
    A("buffer_load_dwordx4 v[12:15], v3, s[36:39], s4 offen")
    srd(40, SRC_, SRC_+1, E*4)
    A("buffer_load_dwordx4 v[16:19], v3, s[40:43], s3 offen")
    A("buffer_load_dwordx4 v[20:23], v3, s[40:43], s4 offen")
    srd(44, E_, E_+1, E*2)
    A("buffer_load_dwordx2 v[24:25], v4, s[44:47], s5 offen")
    A("buffer_load_dwordx2 v[26:27], v4, s[44:47], s6 offen")
    srd(48, WS_, WS_+1, NCH*CH*8, REC_OFF)
    srd(52, WS_, WS_+1, 256*1024, OFF_OFF)
    A("s_barrier")
    stamp(1)
    for half in range(2):
        A(f"s_waitcnt vmcnt({5-half})")
        if half == 0: stamp(2)
        for i in range(4*half, 4*half+4):
            A(f"v_mul_u32_u24 v{28+i}, 5350, v{8+i}")
            A(f"v_lshrrev_b32 v{60+i}, 18, v{28+i}")
            A(f"v_lshlrev_b32 v{28+i}, 2, v{60+i}")
            A(f"ds_add_rtn_u32 v{36+i}, v{28+i}, v5")
            A(f"v_lshlrev_b32 v{8+i}, 2, v{8+i}")
            A(f"v_mad_i32_i24 v{45+2*i}, v{28+i}, s10, v{8+i}")
    A("s_mov_b32 s11, 0xffff0000")
    A("s_waitcnt vmcnt(0)")
    for i in range(4):
        A(f"v_lshl_or_b32 v{44+4*i}, v{24+i}, 16, v{16+2*i}")
        A(f"v_and_or_b32 v{46+4*i}, v{24+i}, s11, v{17+2*i}")
    A("s_waitcnt lgkmcnt(0)")
    stamp(3)
    A("s_barrier")
    stamp(4)
    A("s_mov_b64 exec, -1")
    A("v_and_b32 v1, 63, v0")
    A("v_lshlrev_b32 v1, 4, v1")
    A(f"ds_read_b128 v[60:63], v1 offset:{HIST}")
    A("s_waitcnt lgkmcnt(0)")
    A("v_add_u32 v65, v60, v61")
    A("v_add_u32 v66, v65, v62")
    A("v_add_u32 v67, v66, v63")
    A("v_mov_b32 v68, v67")
    scan64(68)
    A("v_sub_u32 v68, v68, v67")
    A("v_add_u32 v69, v68, v60")
    A("v_add_u32 v70, v68, v65")
    A("v_add_u32 v71, v68, v66")
    A(f"v_mov_b32 v6, {STAGE}")
    for i in range(4):
        A(f"v_lshl_add_u32 v{72+i}, v{68+i}, 3, v6")
    A(f"ds_write_b128 v1, v[72:75] offset:{BASE}")
    A("s_cmp_lg_u32 s7, 6")
    A("s_cbranch_scc1 K1_NOOFF")
    for i in range(4):
        A(f"v_lshl_or_b32 v{76+i}, v{68+i}, 16, v{60+i}")
    A(f"s_lshl_b32 s11, s34, {OGL+2}")
    A(f"v_lshrrev_b32 v2, {OGL+2}, v1")
    A(f"v_and_b32 v80, {OG*4-1}, v1")
    A(f"v_lshl_or_b32 v2, v2, {OGL+10}, v80")
    A(f"buffer_store_dwordx4 v[76:79], v2, s[52:55], s11 offen{SC}")
    L("K1_NOOFF")
    A("s_waitcnt lgkmcnt(0)")
    A("s_mov_b64 exec, s[8:9]")
    for i in range(8):
        A(f"ds_read_b32 v{60+i}, v{28+i} offset:{BASE}")
    for i in range(8):
        A(f"s_waitcnt lgkmcnt(7)")
        A(f"v_lshl_add_u32 v{60+i}, v{36+i}, 3, v{60+i}")
        A(f"ds_write_b64 v{60+i}, v[{44+2*i}:{45+2*i}]")
    A(f"s_mul_i32 s12, s34, {CH*8}")
    A(f"s_add_u32 s13, s12, {CH*2}")
    A(f"s_add_u32 s14, s12, {CH*4}")
    A(f"s_add_u32 s15, s12, {CH*6}")
    A("s_waitcnt lgkmcnt(0)")
    A("s_barrier")
    stamp(5)
    for k in range(4):
        A(f"ds_read_b128 v[{8+4*k}:{11+4*k}], v3 offset:{STAGE+CH*2*k}")
    for k in range(4):
        A(f"s_waitcnt lgkmcnt({3-k})")
        A(f"buffer_store_dwordx4 v[{8+4*k}:{11+4*k}], v3, s[48:51], s{12+k} offen{SC}")
    if DBG: A("s_waitcnt vmcnt(0)")
    stamp(6)
    rstamp(9)
    dbg_dump(10, 7, "K1_DBGB", 217, 2, 0, 0)
    A("s_endpgm")
    L("K1_GEMM")
    if GF: A(f"s_mov_b32 s3, s2")
    else: A(f"s_sub_u32 s3, s2, {NCH}")
    A("s_and_b32 s4, s7, 3")
    A("s_lshr_b32 s6, s7, 2")
    A("v_and_b32 v1, 63, v0")
    A("v_and_b32 v2, 31, v1")
    A("v_lshrrev_b32 v4, 5, v1")
    A("s_lshl_b32 s8, s3, 7")
    A("s_lshl_b32 s9, s4, 5")
    A("s_add_u32 s8, s8, s9")
    A("v_add_u32 v2, s8, v2")
    A("v_lshlrev_b32 v5, 7, v2")
    A("v_lshl_add_u32 v5, v4, 4, v5")
    A("s_waitcnt lgkmcnt(0)")
    srd(36, G_, G_+1, 129*128)
    A("s_movk_i32 s10, 0x2000")
    A("buffer_load_dwordx4 v[8:11], v3, s[36:39], s10 offen")
    srd(40, V_, V_+1, 8192)
    A("buffer_load_dwordx4 v[12:15], v3, s[40:43], 0 offen")
    srd(48, X_, X_+1, N*128)
    for sidx in range(4):
        A(f"buffer_load_dwordx4 v[{24+4*sidx}:{27+4*sidx}], v5, s[48:51], 0 offen offset:{32*sidx}")
    srd(52, WS_, WS_+1, N*256, T_OFF)
    tr_lane_addr(6, 1, 4, 7)
    A("s_lshl_b32 s11, s6, 6")
    A("v_add_u32 v6, s11, v6")
    A("s_mul_i32 s11, s7, 4608")
    A("s_add_u32 s11, s11, 16384")
    A("v_and_b32 v104, 31, v1")
    A("v_mul_u32_u24 v104, 144, v104")
    A("v_lshl_add_u32 v104, v4, 6, v104")
    A("v_add_u32 v104, s11, v104")
    A("v_lshrrev_b32 v105, 3, v1")
    A("v_and_b32 v106, 7, v1")
    A("v_lshlrev_b32 v106, 4, v106")
    A("v_add_u32 v2, s8, v105")
    A("v_mul_u32_u24 v105, 144, v105")
    A("v_add3_u32 v105, v105, v106, s11")
    A("v_lshl_add_u32 v2, v2, 8, v106")
    A("s_lshl_b32 s11, s6, 7")
    A("v_add_u32 v2, s11, v2")
    for k in range(2):
        A(f"s_waitcnt vmcnt({5-k})")
        A(f"ds_write_b128 v3, v[{8+4*k}:{11+4*k}] offset:{8192*k}")
    A("s_waitcnt lgkmcnt(0)")
    stamp(1)
    A("s_barrier")
    stamp(2)
    AX, AH, DX, DH = 40, 56, 72, 88
    for sidx in range(4):
        for u in range(2):
            A(f"ds_read_b64_tr_b16 v[{AX+4*sidx+2*u}:{AX+4*sidx+2*u+1}], v6 offset:{sidx*2048+u*512}")
        for u in range(2):
            A(f"ds_read_b64_tr_b16 v[{AH+4*sidx+2*u}:{AH+4*sidx+2*u+1}], v6 offset:{8192+sidx*2048+u*512}")
    A("s_waitcnt vmcnt(0)")
    for sidx in range(4):
        A(f"s_waitcnt lgkmcnt({14-4*sidx})")
        cx = "0" if sidx == 0 else v(DX, 16)
        A(f"v_mfma_f32_32x32x16_bf16 {v(DX,16)}, {v(AX+4*sidx,4)}, {v(24+4*sidx,4)}, {cx}")
        A(f"s_waitcnt lgkmcnt({12-4*sidx})")
        ch = "0" if sidx == 0 else v(DH, 16)
        A(f"v_mfma_f32_32x32x16_bf16 {v(DH,16)}, {v(AH+4*sidx,4)}, {v(24+4*sidx,4)}, {ch}")
    stamp(3)
    A(f"s_mov_b32 s40, 0x{NEGL:x}")
    A("s_mov_b32 s41, 0x00800000")
    A("s_mov_b32 s42, 0x7fff0000")
    A("s_mov_b32 s43, 0x80000000")
    A("s_nop 7")
    A("s_nop 3")
    for i in range(16):
        A(f"v_fma_f32 v{DX+i}, s40, v{DX+i}, {KLOG}")
    for i in range(16):
        A(f"v_exp_f32 v{DX+i}, v{DX+i}")
    def comp(dst, B, lo, t1, t2):
        A(f"v_max_f32 v{t1}, abs(v{B}), s41")
        A(f"v_and_or_b32 v{t2}, v{B}, s43, v{lo}")
        A(f"v_sub_u32 v{t1}, v{t1}, v{lo}")
        A(f"v_add_u32 v{t1}, 0x8000, v{t1}")
        A(f"v_bfi_b32 v{dst}, s42, v{t1}, v{t2}")
    for grp in range(2):
        ps = [4*grp + j for j in range(4)]
        T1 = [8, 9, 10, 11]; T2 = [12, 13, 14, 15]; LO = [16, 17, 18, 19]
        for j, p in enumerate(ps):
            A(f"v_cvt_pk_bf16_f32 v{LO[j]}, v{DH+2*p}, 0")
        for j, p in enumerate(ps):
            comp(DX+2*p, DX+2*p, LO[j], T1[j], T2[j])
        for j, p in enumerate(ps):
            A(f"v_lshrrev_b32 v{LO[j]}, 16, v{DX+2*p}")
        for j, p in enumerate(ps):
            comp(DH+2*p+1, DH+2*p+1, LO[j], T1[j], T2[j])
        for j, p in enumerate(ps):
            A(f"v_lshrrev_b32 v{LO[j]}, 16, v{DH+2*p+1}")
        for j, p in enumerate(ps):
            comp(DX+2*p+1, DX+2*p+1, LO[j], T1[j], T2[j])
        for k in range(2):
            kk = 2*grp + k
            A(f"ds_write_b128 v104, v[{DX+4*kk}:{DX+4*kk+3}] offset:{16*kk}")
    A("s_waitcnt lgkmcnt(0)")
    for i in range(4):
        A(f"ds_read_b128 v[{8+4*i}:{11+4*i}], v105 offset:{8*144*i}")
    for i in range(4):
        A(f"s_waitcnt lgkmcnt({3-i})")
        A(f"buffer_store_dwordx4 v[{8+4*i}:{11+4*i}], v2, s[52:55], 0 offen offset:{2048*i if i < 2 else 2048*(i-2)}{SC}")
        if i == 1: A("v_add_u32 v2, 4096, v2")
    stamp(4)
    if DBG: A("s_waitcnt vmcnt(0)")
    stamp(5)
    stamp(6)
    rstamp(9)
    dbg_dump(10, 7, "K1_DBGG", 50 if GF else 300, 2, 2, 0)
    A("s_endpgm")
    L("K1_FRAG")
    A("v_and_b32 v1, 63, v0")
    A("v_lshrrev_b32 v4, 5, v1")
    A("v_and_b32 v5, 15, v1")
    A("v_lshrrev_b32 v6, 4, v1")
    A("v_lshlrev_b32 v6, 1, v6")
    A("v_lshl_add_u32 v5, v5, 3, v6")
    A("s_waitcnt lgkmcnt(0)")
    srd(36, G_, G_+1, 129*128)
    A("buffer_load_dwordx4 v[8:11], v3, s[36:39], 0 offen")
    srd(40, U_, U_+1, 8192)
    A("buffer_load_dwordx4 v[12:15], v3, s[40:43], 0 offen")
    A("s_movk_i32 s4, 0x4000")
    A("buffer_load_ushort v20, v5, s[36:39], s4 offen")
    srd(52, WS_, WS_+1, FR_SIZE, FR_OFF)
    tr_lane_addr(6, 1, 4, 7)
    A("s_lshr_b32 s4, s7, 1")
    A("s_and_b32 s5, s7, 1")
    A("s_lshl_b32 s4, s4, 13")
    A("s_lshl_b32 s5, s5, 6")
    A("s_add_u32 s4, s4, s5")
    A("v_add_u32 v6, s4, v6")
    A("v_lshlrev_b32 v2, 4, v1")
    for k in range(2):
        A(f"s_waitcnt vmcnt({2-k})")
        A(f"ds_write_b128 v3, v[{8+4*k}:{11+4*k}] offset:{8192*k}")
    A("s_waitcnt lgkmcnt(0)")
    A("s_barrier")
    A("s_cmp_eq_u32 s7, 4")
    A("s_cbranch_scc1 K1_COEF")
    A("s_cmp_gt_u32 s7, 4")
    A("s_cbranch_scc1 K1_END")
    for sidx in range(4):
        for u in range(2):
            A(f"ds_read_b64_tr_b16 v[{40+4*sidx+2*u}:{40+4*sidx+2*u+1}], v6 offset:{sidx*2048+u*512}")
    A("s_lshl_b32 s4, s7, 12")
    for sidx in range(4):
        A(f"s_waitcnt lgkmcnt({6-2*sidx})")
        A(f"buffer_store_dwordx4 v[{40+4*sidx}:{43+4*sidx}], v2, s[52:55], s4 offen offset:{1024*sidx}{SC}")
    A("s_endpgm")
    L("K1_COEF")
    A("s_waitcnt vmcnt(0)")
    A("v_lshlrev_b32 v20, 16, v20")
    A("v_and_b32 v60, 0x7fffffff, v20")
    scan64(60, "v_max_u32_dpp")
    A("s_nop 1")
    A("v_readlane_b32 s5, v60, 63")
    A("s_lshr_b32 s4, s5, 23")
    A("s_max_u32 s4, s4, 1")
    A("s_lshl_b32 s8, s4, 23")
    A("s_cmp_gt_u32 s4, 253")
    A("s_cselect_b32 s8, 0x7fc00000, s8")
    A("s_min_u32 s4, s4, 253")
    A("s_sub_u32 s4, 254, s4")
    A("s_lshl_b32 s4, s4, 23")
    A("s_or_b32 s4, s4, 0x80000000")
    A("v_mov_b32 v70, s5")
    A("v_mul_f32 v60, s4, v20")
    A("v_mul_f32 v70, s4, v70")
    A("v_mul_f32 v70, v70, v70")
    A("v_max_f32 v70, 1.0, v70")
    A("v_rcp_f32 v71, v70")
    A("v_mov_b32 v70, s8")
    for k in range(1, 8):
        A(f"v_mul_f32 v{60+k}, v{60+k-1}, v60")
    for k in range(1, 8):
        A(f"v_mul_f32 v{60+k}, 0x{f32bits(POLY[k]):x}, v{60+k}")
    for k in range(8):
        A(f"v_cvt_f16_f32 v{60+k}, v{60+k}")
    for k in range(4):
        A(f"v_pack_b32_f16 v{40+k}, v{60+2*k}, v{61+2*k}")
    A(f"s_movk_i32 s4, {FR_B}")
    A(f"buffer_store_dwordx4 v[40:43], v2, s[52:55], s4 offen{SC}")
    A("v_lshlrev_b32 v2, 3, v1")
    A(f"buffer_store_dwordx2 v[70:71], v2, s[52:55], s4 offen offset:{FR_S-FR_B}{SC}")
    L("K1_END")
    A("s_endpgm")

RS_ = 272
AGG, IA, XAL = 0, 52*RS_, 104*RS_
CNT = 156*RS_; CNT2 = CNT + 256; CUR2 = CNT + 512; SPN = CNT + 768; ZR = CNT + 1024
SP = CNT + 2048
SI = SP + 4096
CAP = 5120
PW = SI + (CAP + 256)*4
K2_LDS = PW + CAP*16 + 2560
assert PW % 16 == 0 and K2_LDS <= 163840
DUMMY = 0x7b00
OOB = 0x80000000

def k2():
    out.append(".globl k2_kernel")
    out.append(".p2align 8")
    out.append(".type k2_kernel,@function")
    L("k2_kernel")
    A(f"s_cmp_ge_u32 s2, {NB}")
    A("s_cbranch_scc1 K2_END")
    stamp(0)
    rstamp(8)
    if DBG: A("s_mov_b32 s93, 0")
    A("s_load_dwordx16 s[16:31], s[0:1], 0")
    A("s_load_dwordx2 s[32:33], s[0:1], 72")
    A("s_and_b32 s3, s2, 7")
    A("s_lshr_b32 s2, s2, 3")
    A("s_lshl_b32 s3, s3, 5")
    A("s_or_b32 s2, s2, s3")
    S_WAVE = 7
    SRD_T, SRD_REC, SRD_A, SRD_G, SRD_X = 36, 40, 44, 48, 52
    S_WLO, S_WHI, S_MODE, S_ESC = 56, 57, 58, 59
    S_M = 60
    S_NE = 72
    S_Q, S_Q1, S_RUN, S_QB, S_REM, S_END, S_BIG, S_CNODE = 74, 75, 76, 77, 78, 79, 80, 81
    S_RET = 82
    S_I, S_NODE = 84, 85
    S_THR, S_RET2 = 6, 34
    V_LANE, V_LOFF, V_PADDR, V_CNT, V_RADDR, V_I0, V_ONE, V_W, V_OFF = 1, 2, 3, 4, 5, 6, 7, 8, 9
    V_B = 10
    V_XU = 14
    V_END, V_BQ = 18, 19
    V_CE = 22
    V_R = 24
    V_RK = 36
    V_LA = 42
    V_A = 48
    V_WD = 52
    V_C = 20
    V_X = 96
    GA, GD = 64, 80
    A("v_lshrrev_b32 v22, 6, v0")
    A(f"v_and_b32 v{V_LANE}, 63, v0")
    A(f"v_readfirstlane_b32 s{S_WAVE}, v22")
    A("v_and_b32 v22, 15, v0")
    A(f"v_lshlrev_b32 v{V_LOFF}, 4, v22")
    A(f"v_lshrrev_b32 v{V_PADDR}, 4, v0")
    A(f"v_mul_u32_u24 v{V_PADDR}, {RS_}, v{V_PADDR}")
    A(f"v_add_u32 v{V_PADDR}, v{V_PADDR}, v{V_LOFF}")
    A(f"v_lshrrev_b32 v{V_W}, 2, v0")
    A(f"v_and_b32 v{V_I0}, 3, v0")
    A(f"v_lshlrev_b32 v{V_I0}, 1, v{V_I0}")
    A(f"v_lshlrev_b32 v19, {OGL+2}, v{V_W}")
    A(f"v_cmp_gt_u32 vcc, {NCH}, v{V_W}")
    A(f"s_lshr_b32 s3, s2, {OGL}")
    A(f"s_lshl_b32 s3, s3, {OGL+10}")
    A(f"s_and_b32 s4, s2, {OG-1}")
    A("s_lshl2_add_u32 s3, s4, s3")
    A(f"v_cndmask_b32 v19, 0.5, v19, vcc")
    A(f"v_mov_b32 v{V_ONE}, 1")
    A("v_and_b32 v22, 511, v0")
    A("v_lshlrev_b32 v23, 2, v22")
    A("v_mov_b32 v48, 0")
    A(f"ds_write_b32 v23, v48 offset:{CNT}")
    A(f"v_lshlrev_b32 v22, 4, v{V_LANE}")
    A(f"v_lshlrev_b32 v21, 3, v{V_LANE}")
    A(f"s_and_b32 s4, s{S_WAVE}, 1")
    A("s_lshl_b32 s4, s4, 5")
    A(f"s_mul_i32 s5, s2, {BN}")
    A("s_add_u32 s5, s5, s4")
    A(f"v_and_b32 v56, 31, v{V_LANE}")
    A(f"v_lshrrev_b32 v57, 5, v{V_LANE}")
    A(f"v_add_u32 v58, s5, v56")
    A("v_lshlrev_b32 v58, 7, v58")
    A("v_lshl_add_u32 v58, v57, 4, v58")
    A(f"v_add_u32 v56, s4, v56")
    A(f"s_lshr_b32 s9, s{S_WAVE}, 1")
    A("s_lshl_b32 s5, s9, 12")
    A(f"s_movk_i32 s4, {FR_B}")
    A("s_waitcnt lgkmcnt(0)")
    srd(SRD_A, WS_, WS_+1, 256*1024, OFF_OFF)
    A(f"buffer_load_dword v{V_OFF}, v19, {s4(SRD_A)}, s3 offen")
    srd(12, WS_, WS_+1, FR_SIZE, FR_OFF)
    if flag("bar1"): A("s_barrier")
    A(f"buffer_load_dwordx4 {v(V_B,4)}, v22, s[12:15], s4 offen")
    A(f"buffer_load_dwordx2 v[20:21], v21, s[12:15], s4 offen offset:{FR_S-FR_B}")
    srd(SRD_X, X_, X_+1, N*128)
    A(f"s_cmp_ge_u32 s{S_WAVE}, 8")
    A("s_cbranch_scc1 K2_NOG")
    for sidx in range(4):
        A(f"buffer_load_dwordx4 {v(GA+4*sidx,4)}, v22, s[12:15], s5 offen offset:{1024*sidx}")
        A(f"buffer_load_dwordx4 {v(V_X+4*sidx,4)}, v58, {s4(SRD_X)}, 0 offen offset:{32*sidx}")
    L("K2_NOG")
    srd(SRD_G, G_, G_+1, 129*128)
    srd(SRD_T, WS_, WS_+1, N, T_OFF)
    A(f"s_or_b32 s{SRD_T+1}, s{SRD_T+1}, 0x1000000")
    srd(SRD_REC, WS_, WS_+1, NCH*CH*8, REC_OFF)
    A(f"s_mov_b32 s{S_WLO}, 0")
    A(f"s_mov_b32 s{S_WHI}, {NCH}")
    A(f"s_mov_b32 s{S_MODE}, 0")
    A(f"v_mul_u32_u24 v22, {CH}, v{V_W}")
    A(f"v_add_u32 v22, v22, v{V_I0}")
    if not flag("bar1"): A("s_barrier")
    A(f"s_cmp_ge_u32 s{S_WAVE}, 8")
    A("s_cbranch_scc1 K2_W2")
    A("s_waitcnt vmcnt(10)")
    A("s_branch K2_W3")
    L("K2_W2")
    A("s_waitcnt vmcnt(2)")
    L("K2_W3")
    stamp(1)
    A(f"v_and_b32 v{V_CNT}, 0xffff, v{V_OFF}")
    A(f"v_lshrrev_b32 v{V_RADDR}, 16, v{V_OFF}")
    A(f"v_add_lshl_u32 v{V_RADDR}, v{V_RADDR}, v22, 3")
    A(f"v_mov_b32 v{V_CE}, v{V_CNT}")
    L("K2_WIN")
    A(f"v_mov_b32 v51, 0x{OOB:x}")
    A(f"v_sub_u32 v23, v{V_CE}, v{V_I0} clamp")
    for k in range(6):
        r, j = k >> 1, k & 1
        A(f"v_cmp_lt_u32 {s2(S_M+2*k)}, {8*r+j}, v23")
    A("s_nop 0")
    for r in range(3):
        A(f"v_cndmask_b32 v{V_A+r}, v51, v{V_RADDR}, {s2(S_M+4*r)}")
        A(f"buffer_load_dwordx4 {v(V_R+4*r,4)}, v{V_A+r}, {s4(SRD_REC)}, 0 offen offset:{64*r}")
    A(f"s_cmp_lg_u32 s{S_MODE}, 0")
    A("s_cbranch_scc1 K2_SKIPINIT")
    A(f"s_cmp_ge_u32 s{S_WAVE}, 8")
    A("s_cbranch_scc1 K2_SKIPINIT")
    A(f"s_lshr_b32 s4, s{S_WAVE}, 2")
    A(f"s_bfe_u32 s5, s{S_WAVE}, 0x10001")
    A(f"v_mul_u32_u24 v59, {RS_}, v56")
    A("v_lshl_add_u32 v59, v57, 6, v59")
    A("s_lshl_b32 s9, s5, 7")
    A("v_add_u32 v59, s9, v59")
    A(f"v_cmp_gt_u32 s[10:11], {BN}, v56")
    for sidx in range(4):
        A(f"s_waitcnt vmcnt({9-2*sidx})")
        c = "0" if sidx == 0 else v(GD, 16)
        A(f"v_mfma_f32_32x32x16_bf16 {v(GD,16)}, {v(GA+4*sidx,4)}, {v(V_X+4*sidx,4)}, {c}")
    A(f"s_mov_b32 s8, 0x{NEGL:x}")
    A(f"s_mov_b32 s9, 0x{f32bits(3.3):x}")
    A("s_nop 7")
    A("s_nop 3")
    A("s_cmp_lg_u32 s4, 0")
    A("s_mov_b64 exec, s[10:11]")
    A("s_cbranch_scc1 K2_GU")
    for i in range(16):
        A(f"v_mul_f32 v{GD+i}, s8, v{GD+i}")
    for kk in range(4):
        A(f"ds_write_b128 v59, {v(GD+4*kk,4)} offset:{XAL+16*kk}")
    for i in range(16):
        A(f"v_sub_f32 v{GA+i}, {KLOG}, v{GD+i}")
    for i in range(16):
        A(f"v_exp_f32 v{GA+i}, v{GA+i}")
    A("v_mov_b32 v60, 0x7fc00000")
    for i in range(16):
        A(f"v_cmp_le_f32_e64 s[{12+2*(i&1)}:{13+2*(i&1)}], v{GD+i}, s9")
        if i >= 1:
            j = i - 1
            A("s_nop 0")
            A(f"v_cndmask_b32_e64 v{GA+j}, v60, v{GA+j}, s[{12+2*(j&1)}:{13+2*(j&1)}]")
    A("s_nop 1")
    A(f"v_cndmask_b32_e64 v{GA+15}, v60, v{GA+15}, s[14:15]")
    for kk in range(4):
        A(f"ds_write_b128 v59, {v(GA+4*kk,4)} offset:{IA+16*kk}")
    A("s_branch K2_GJ")
    L("K2_GU")
    for kk in range(4):
        A(f"ds_write_b128 v59, {v(GD+4*kk,4)} offset:{AGG+16*kk}")
    L("K2_GJ")
    A("s_mov_b64 exec, -1")
    L("K2_SKIPINIT")
    for k in range(6):
        if k % 2 == 0:
            A(f"s_waitcnt vmcnt({2-k//2})")
        A(f"s_mov_b64 exec, {s2(S_M+2*k)}")
        A(f"ds_add_rtn_u32 v{V_RK+k}, v{V_R+2*k+1}, v{V_ONE} offset:{CNT}")
    A("s_mov_b64 exec, -1")
    A(f"s_cmp_lg_u32 s{S_MODE}, 0")
    A("s_cbranch_scc1 K2_NOSC")
    A(f"v_readfirstlane_b32 s{S_ESC}, v20")
    A(f"v_readfirstlane_b32 s{S_THR}, v21")
    L("K2_NOSC")
    A("v_cmp_lt_u32 vcc, 24, v23")
    A("s_cbranch_vccz K2_NOOV1")
    A(f"s_mov_b32 s{S_I}, 24")
    L("K2_OV1")
    A(f"v_cmp_lt_u32 vcc, s{S_I}, v23")
    A(f"s_lshl_b32 s4, s{S_I}, 3")
    A(f"s_add_u32 s5, s{S_I}, 1")
    A(f"v_cndmask_b32 v52, v51, v{V_RADDR}, vcc")
    A(f"buffer_load_dwordx4 v[56:59], v52, {s4(SRD_REC)}, s4 offen")
    A(f"v_cmp_lt_u32 s[8:9], s5, v23")
    A("s_waitcnt vmcnt(0)")
    A("s_mov_b64 exec, vcc")
    A(f"ds_add_u32 v57, v{V_ONE} offset:{CNT2}")
    A("s_mov_b64 exec, s[8:9]")
    A(f"ds_add_u32 v59, v{V_ONE} offset:{CNT2}")
    A("s_mov_b64 exec, -1")
    A(f"s_add_u32 s{S_I}, s{S_I}, 8")
    A(f"v_cmp_lt_u32 vcc, s{S_I}, v23")
    A("s_cbranch_vccnz K2_OV1")
    L("K2_NOOV1")
    A("s_waitcnt lgkmcnt(0)")
    stamp(2)
    A("s_barrier")
    stamp(3)
    A(f"v_lshlrev_b32 v52, 2, v{V_LANE}")
    A(f"ds_read_b32 v53, v52 offset:{CNT}")
    A(f"ds_read_b32 v54, v52 offset:{CNT2}")
    A(f"s_cmp_lg_u32 s{S_MODE}, 0")
    A("s_cbranch_scc1 K2_NOXU")
    A(f"s_cmp_gt_u32 s{S_WAVE}, 12")
    A("s_cbranch_scc1 K2_NOXU")
    A(f"ds_read_b128 {v(V_XU,4)}, v{V_PADDR} offset:{AGG}")
    for i in range(4):
        A(f"v_mov_b32 v{88+i}, 0")
    A("s_waitcnt lgkmcnt(0)")
    A(f"ds_write_b128 v{V_PADDR}, v[88:91] offset:{AGG}")
    L("K2_NOXU")
    A("s_waitcnt lgkmcnt(0)")
    A("v_add_u32 v55, v53, v54")
    A("v_add_u32 v56, 3, v55")
    A("v_and_b32 v56, -4, v56")
    A("v_mov_b32 v57, v56")
    scan64(57)
    A("v_cmp_ne_u32 s[10:11], 0, v54")
    A(f"v_cmp_ne_u32 {s2(S_NE)}, 0, v56")
    A("v_readlane_b32 s12, v57, 63")
    A(f"v_lshrrev_b32 v{V_END}, 2, v57")
    A("v_sub_u32 v57, v57, v56")
    A(f"v_lshrrev_b32 v{V_BQ}, 2, v57")
    A("v_lshlrev_b32 v57, 2, v57")
    A(f"s_cmp_gt_u32 s12, {CAP}")
    A("s_cbranch_scc1 K2_FALLBACK")
    for k in range(6):
        A(f"ds_bpermute_b32 v{88+k}, v{V_R+2*k+1}, v57")
    for k in range(6):
        A(f"s_waitcnt lgkmcnt(5)")
        A(f"s_mov_b64 exec, {s2(S_M+2*k)}")
        A(f"v_lshl_add_u32 v{88+k}, v{V_RK+k}, 2, v{88+k}")
        A(f"ds_write_b32 v{88+k}, v{V_R+2*k} offset:{SI}")
    A("s_mov_b64 exec, -1")
    A(f"s_cmp_lg_u32 s{S_WAVE}, 15")
    A("s_cbranch_scc1 K2_NODUM")
    A(f"v_mov_b32 v59, 0x{DUMMY:x}")
    A("v_lshl_add_u32 v94, v55, 2, v57")
    A("v_sub_u32 v58, v56, v55")
    for j in range(3):
        A(f"v_cmpx_lt_u32 vcc, {j}, v58")
        A(f"ds_write_b32 v94, v59 offset:{SI+4*j}")
    A("s_mov_b64 exec, -1")
    A("v_lshl_add_u32 v94, v53, 2, v57")
    A(f"ds_write_b32 v52, v94 offset:{CUR2}")
    L("K2_NODUM")
    A("s_cmp_eq_u64 s[10:11], 0")
    A("s_cbranch_scc1 K2_NOOV2")
    A("s_waitcnt lgkmcnt(0)")
    A("s_barrier")
    A("v_cmp_lt_u32 vcc, 24, v23")
    A("s_cbranch_vccz K2_NOOV2")
    A(f"s_mov_b32 s{S_I}, 24")
    A("v_mov_b32 v60, 4")
    L("K2_OV2")
    A(f"v_cmp_lt_u32 s[14:15], s{S_I}, v23")
    A(f"s_lshl_b32 s4, s{S_I}, 3")
    A(f"s_add_u32 s5, s{S_I}, 1")
    A(f"v_cndmask_b32 v52, v51, v{V_RADDR}, s[14:15]")
    A(f"buffer_load_dwordx4 v[56:59], v52, {s4(SRD_REC)}, s4 offen")
    A(f"v_cmp_lt_u32 s[8:9], s5, v23")
    A("s_waitcnt vmcnt(0)")
    A("s_mov_b64 exec, s[14:15]")
    A(f"ds_add_rtn_u32 v53, v57, v60 offset:{CUR2}")
    A("s_mov_b64 exec, s[8:9]")
    A(f"ds_add_rtn_u32 v54, v59, v60 offset:{CUR2}")
    A("s_waitcnt lgkmcnt(0)")
    A(f"ds_write_b32 v54, v58 offset:{SI}")
    A("s_mov_b64 exec, s[14:15]")
    A(f"ds_write_b32 v53, v56 offset:{SI}")
    A("s_mov_b64 exec, -1")
    A(f"s_add_u32 s{S_I}, s{S_I}, 8")
    A(f"v_cmp_lt_u32 vcc, s{S_I}, v23")
    A("s_cbranch_vccnz K2_OV2")
    L("K2_NOOV2")
    IX = 24
    AR = 32
    PR = 48
    DS = 56
    VIA, VIAN, VN, VD, VACC, VS, VH, VU, VT = 72, 76, 80, 84, 88, 92, 96, 100, 104
    VRA, VRI, VINC, VDST, VG4, VNX, VREC, VPR, VPW = 108, 109, 110, 111, 112, 113, 114, 115, 116
    SL = 118
    S_PAR = 9
    A("s_lshr_b32 s12, s12, 2")
    A(f"s_mul_i32 s13, s12, s{S_WAVE}")
    A(f"s_add_u32 s14, s13, s12")
    A(f"s_lshr_b32 s{S_Q}, s13, 4")
    A(f"s_lshr_b32 s{S_Q1}, s14, 4")
    A(f"v_cmp_lt_u32 vcc, s{S_Q}, v{V_END}")
    A(f"v_lshrrev_b32 v{VG4}, 4, v{V_LANE}")
    A(f"v_and_b32 v{VT}, 3, v{V_LANE}")
    A(f"s_and_b64 {s2(S_NE)}, {s2(S_NE)}, vcc")
    A(f"v_cmp_eq_u32 vcc, v{VT}, v{VG4}")
    A(f"s_ff1_i32_b64 s{S_CNODE}, {s2(S_NE)}")
    A(f"s_max_i32 s{S_CNODE}, s{S_CNODE}, 0")
    A(f"s_bitset0_b64 {s2(S_NE)}, s{S_CNODE}")
    A(f"v_mov_b32 v{VT+1}, 512")
    A(f"v_cndmask_b32 v{VINC}, 0, v{VT+1}, vcc")
    A(f"v_bfe_u32 v{VT}, v{V_LANE}, 2, 2")
    A(f"s_lshl_b32 s4, s{S_Q}, 6")
    A(f"s_add_u32 s4, s4, {PW}")
    A(f"v_lshl_add_u32 v{VT}, v{VT}, 4, s4")
    A(f"v_lshl_add_u32 v{VPW}, v{V_LANE}, 4, s4")
    A(f"v_mov_b32 v{VT+1}, {ZR}")
    A(f"v_cndmask_b32 v{VRA}, v{VT+1}, v{VT}, vcc")
    A(f"v_lshlrev_b32 v{VG4}, 2, v{VG4}")
    A(f"s_lshl_b32 s4, s{S_Q}, 4")
    A(f"s_add_u32 s4, s4, {SI}")
    A(f"v_add_u32 v{VRI}, s4, v{VG4}")
    A(f"v_lshl_add_u32 v{VPR}, v{V_LANE}, 2, s4")
    for k in range(4):
        A(f"v_mov_b32 v{IX+2*k+1}, v{V_LOFF}")
    A(f"s_mov_b32 s{S_PAR}, 0")
    A(f"v_readlane_b32 s{S_END}, v{V_END}, s{S_CNODE}")
    A(f"v_readlane_b32 s5, v{V_BQ}, s{S_CNODE}")
    A(f"s_mul_i32 s4, s{S_CNODE}, {RS_}")
    A(f"v_add_u32 v{VNX}, s4, v{V_LOFF}")
    A(f"v_add_u32 v{VDST}, v{VNX}, v{VG4}")
    A(f"s_lshl_b32 s15, s{S_WAVE}, 2")
    A(f"v_mov_b32 v{VU}, s15")
    A(f"v_mov_b32 v{VU+1}, 0xffff")
    A(f"s_min_u32 s{S_REM}, s{S_END}, s{S_Q1}")
    A(f"s_sub_u32 s{S_REM}, s{S_REM}, s{S_Q}")
    A(f"s_mov_b32 s{S_RUN}, s{S_Q}")
    A(f"s_mov_b32 s{S_BIG}, 0x{f32bits(2.0**118):x}")
    A(f"s_cmp_lt_u32 s5, s{S_Q}")
    A("s_cbranch_scc0 K2_NOSHARE")
    A(f"s_lshl_b32 s4, s{S_WAVE}, 8")
    A(f"s_add_u32 s4, s4, {SP}")
    A(f"v_add3_u32 v{VDST}, v{V_LOFF}, v{VG4}, s4")
    A(f"v_mov_b32 v{VU+1}, s{S_CNODE}")
    L("K2_NOSHARE")
    A(f"s_cmp_eq_u32 s{S_Q}, s{S_Q1}")
    A("s_cselect_b32 s4, 0xffff, 0")
    A(f"v_or_b32 v{VU+1}, s4, v{VU+1}")
    A(f"ds_write_b32 v{VU}, v{VU+1} offset:{SPN}")
    A("s_waitcnt lgkmcnt(0)")
    A("s_barrier")
    stamp(4)
    A(f"s_cmp_eq_u32 s{S_Q}, s{S_Q1}")
    A("s_cbranch_scc1 K2_MAINDONE")
    def powers():
        A(f"v_and_b32 v{VT+1}, 0xffff0000, v{VREC}")
        A(f"v_mul_f32 v{VT+1}, s{S_ESC}, v{VT+1}")
        A(f"v_mul_f32 v{VT+2}, v{VT+1}, v{VT+1}")
        A(f"v_cmp_ge_f32 vcc, s{S_THR}, v{VT+2}")
        A(f"v_cvt_pkrtz_f16_f32 v{VT}, v{VT+1}, v{VT+2}")
        A(f"ds_read_b32 v{VREC}, v{VPR} offset:256")
        A(f"v_add_u32 v{VPR}, 0x100, v{VPR}")
        A(f"v_cndmask_b32 v{VT}, -1, v{VT}, vcc")
        for j in range(3):
            A(f"v_pk_mul_f16 v{VT+j+1}, v{VT+j}, v{VT} op_sel:[0,1] op_sel_hi:[1,1]")
        A(f"ds_write_b128 v{VPW}, {v(VT,4)}")
        A(f"v_add_u32 v{VPW}, 0x400, v{VPW}")
    for k in range(3):
        A(f"ds_read_u16 v{IX+2*k}, v{VRI} offset:{16*k}")
    A(f"ds_read_b32 v{VREC}, v{VPR}")
    A(f"ds_read_u16 v{IX+6}, v{VRI} offset:48")
    A(f"ds_read_b128 {v(VIA,4)}, v{VNX} offset:{IA}")
    for k in range(3):
        A(f"s_waitcnt lgkmcnt({5-k})")
        A(f"buffer_load_dwordx4 {v(DS+4*k,4)}, {v(IX+2*k,2)}, {s4(SRD_T)}, 0 idxen offen")
    A("s_waitcnt lgkmcnt(2)")
    powers()
    for k in range(3):
        A(f"ds_read_b128 {v(AR+4*k,4)}, v{VRA} offset:{64*k}")
    for k in range(4, 6):
        A(f"ds_read_u16 v{IX+2*(k%4)}, v{VRI} offset:{16*k}")
    for i in range(4):
        A(f"v_mov_b32 v{VN+i}, 0")
        A(f"v_mov_b32 v{VD+i}, 1.0")
        A(f"v_mov_b32 v{VACC+i}, 0")
    A("s_waitcnt lgkmcnt(4)")
    A(f"v_mfma_f32_16x16x32_f16 {v(PR,4)}, {v(AR,4)}, {v(V_B,4)}, 1.0")
    A("s_waitcnt lgkmcnt(0)")
    PRIO = not flag("noprio")
    if PRIO: A("s_setprio 3")
    VAR = opt("var", "pk")
    L("K2_LOOP")
    for k in range(8):
        d3 = DS + 4*((k+3) % 4); d0 = DS + 4*(k % 4)
        pc = PR + 4*(k % 2); pn = PR + 4*((k+1) % 2)
        A(f"ds_read_u16 v{IX+2*((k+2)%4)}, v{VRI} offset:{16*(k+6)}")
        A(f"ds_read_b128 {v(AR+4*((k+3)%4),4)}, v{VRA} offset:{64*(k+3)}")
        A("s_waitcnt lgkmcnt(4)")
        A(f"buffer_load_dwordx4 {v(d3,4)}, {v(IX+2*((k+3)%4),2)}, {s4(SRD_T)}, 0 idxen offen")
        A(f"v_mfma_f32_16x16x32_f16 {v(pn,4)}, {v(AR+4*((k+1)%4),4)}, {v(V_B,4)}, 1.0")
        A("s_waitcnt vmcnt(3)")
        A(f"v_lshlrev_b64 {v(VH,2)}, 16, {v(d0,2)}")
        A(f"v_lshlrev_b64 {v(VH+2,2)}, 16, {v(d0+2,2)}")
        if VAR == "pk":
            for j in (0, 2):
                A(f"v_pk_fma_f32 {v(VS+j,2)}, {v(d0+j,2)}, {v(pc+j,2)}, {v(VIA+j,2)}")
            for j in (0, 2):
                A(f"v_pk_mul_f32 {v(VU+j,2)}, {v(VH+j,2)}, {v(VD+j,2)}")
            for j in (0, 2):
                A(f"v_pk_fma_f32 {v(VN+j,2)}, {v(VN+j,2)}, {v(VS+j,2)}, {v(VU+j,2)}")
                A(f"v_pk_mul_f32 {v(VD+j,2)}, {v(VD+j,2)}, {v(VS+j,2)}")
        else:
            for j in range(4):
                A(f"v_fma_f32 v{VS+j}, v{d0+j}, v{pc+j}, v{VIA+j}")
            for j in range(4):
                A(f"v_mul_f32 v{VU+j}, v{VH+j}, v{VD+j}")
            for j in range(4):
                A(f"v_fma_f32 v{VN+j}, v{VN+j}, v{VS+j}, v{VU+j}")
            for j in range(4):
                A(f"v_mul_f32 v{VD+j}, v{VD+j}, v{VS+j}")
        A(f"s_cmp_eq_u32 s{S_REM}, {k+1}")
        A(f"s_cbranch_scc1 K2_FL{k}")
        L(f"K2_BK{k}")
    A(f"v_add_u32 v{VRI}, 128, v{VRI}")
    A(f"v_add_u32 v{VRA}, v{VINC}, v{VRA}")
    A(f"s_add_u32 s{S_Q}, s{S_Q}, 8")
    A(f"s_sub_u32 s{S_REM}, s{S_REM}, 8")
    A(f"s_xor_b32 s{S_PAR}, s{S_PAR}, 1")
    A("s_cbranch_scc0 K2_NOPW")
    powers()
    L("K2_NOPW")
    if PRIO:
        TH = [int(x) for x in opt("prth", "24,16,8").split(",")]
        A(f"s_sub_u32 s3, s{S_Q1}, s{S_Q}")
        A(f"s_cmp_gt_i32 s3, {TH[0]}")
        A("s_cbranch_scc1 K2_PRX")
        A("s_setprio 2")
        A(f"s_cmp_gt_i32 s3, {TH[1]}")
        A("s_cbranch_scc1 K2_PRX")
        A("s_setprio 1")
        A(f"s_cmp_gt_i32 s3, {TH[2]}")
        A("s_cbranch_scc1 K2_PRX")
        A("s_setprio 0")
        L("K2_PRX")
    A(f"s_sub_u32 s3, s{S_Q}, s{S_RUN}")
    A("s_cmp_lt_u32 s3, 16")
    A("s_cbranch_scc1 K2_LOOP")
    def resolve(tag):
        for j in (0, 2):
            A(f"v_pk_mul_f32 {v(VN+j,2)}, {v(VN+j,2)}, {v(VIA+j,2)}")
        A(f"v_pk_add_f32 {v(VH,2)}, {v(VD,2)}, {v(VD+2,2)}")
        for j in (0, 2):
            A(f"v_pk_mul_f32 {v(VU+j,2)}, {v(VN+j,2)}, {v(VT+j,2)}")
        A(f"v_pk_fma_f32 {v(VH,2)}, {v(VU,2)}, 0, {v(VH,2)} op_sel_hi:[1,0,1]")
        A(f"v_pk_fma_f32 {v(VH,2)}, {v(VU+2,2)}, 0, {v(VH,2)} op_sel_hi:[1,0,1]")
        A(f"v_add_f32 v{VH}, v{VH}, v{VH+1}")
        A(f"v_cmp_ngt_f32 vcc, s{S_BIG}, v{VH}")
        A(f"s_cbranch_vccz K2_FOK{tag}")
        A(f"s_call_b64 {s2(S_RET2)}, K2_SLOW")
        L(f"K2_FOK{tag}")
        for j in (0, 2):
            A(f"v_pk_add_f32 {v(VACC+j,2)}, {v(VACC+j,2)}, {v(VU+j,2)}")
    for i in range(4):
        A(f"v_rcp_f32 v{VT+i}, v{VD+i}")
    A(f"s_sub_u32 s{S_QB}, s{S_Q}, 1")
    resolve("R")
    for i in range(4):
        A(f"v_mov_b32 v{VN+i}, 0")
        A(f"v_mov_b32 v{VD+i}, 1.0")
    A(f"s_mov_b32 s{S_RUN}, s{S_Q}")
    A("s_branch K2_LOOP")
    for k in range(8):
        L(f"K2_FL{k}")
        A(f"s_call_b64 {s2(S_RET)}, K2_FLUSH")
        A(f"s_cbranch_scc0 K2_BK{k}")
        A(f"s_branch K2_MAINDONE")
    L("K2_FLUSH")
    for i in range(4):
        A(f"v_rcp_f32 v{VT+i}, v{VD+i}")
    A(f"s_ff1_i32_b64 s{S_NODE}, {s2(S_NE)}")
    A(f"s_max_i32 s{S_NODE}, s{S_NODE}, 0")
    A(f"s_bitset0_b64 {s2(S_NE)}, s{S_NODE}")
    A(f"s_mul_i32 s8, s{S_NODE}, {RS_}")
    A(f"v_add_u32 v{VNX}, s8, v{V_LOFF}")
    A(f"ds_read_b128 {v(VIAN,4)}, v{VNX} offset:{IA}")
    A(f"v_readlane_b32 s{S_END}, v{V_END}, s{S_NODE}")
    A(f"s_add_u32 s{S_QB}, s{S_Q}, s{S_REM}")
    A(f"s_sub_u32 s{S_QB}, s{S_QB}, 1")
    resolve("F")
    A(f"v_mov_b32 v{VN}, 0")
    A(f"v_mov_b32 v{VN+1}, 0")
    A(f"v_permlane32_swap_b32 v{VACC}, v{VACC+2}")
    A(f"v_permlane32_swap_b32 v{VACC+1}, v{VACC+3}")
    A(f"v_mov_b32 v{VN+2}, 0")
    A(f"v_pk_add_f32 {v(VU,2)}, {v(VACC,2)}, {v(VACC+2,2)}")
    A(f"v_mov_b32 v{VN+3}, 0")
    A(f"v_mov_b32 v{VD}, 1.0")
    A(f"v_permlane16_swap_b32 v{VU}, v{VU+1}")
    A(f"v_mov_b32 v{VD+1}, 1.0")
    A(f"v_add_f32 v{VU}, v{VU}, v{VU+1}")
    A(f"ds_write_b32 v{VDST}, v{VU}")
    A(f"s_add_u32 s{S_RUN}, s{S_QB}, 1")
    A(f"s_min_u32 s{S_REM}, s{S_END}, s{S_Q1}")
    A(f"s_sub_u32 s{S_REM}, s{S_REM}, s{S_Q}")
    A(f"s_mov_b32 s{S_CNODE}, s{S_NODE}")
    A(f"v_add_u32 v{VDST}, v{VNX}, v{VG4}")
    A(f"v_mov_b32 v{VD+2}, 1.0")
    A(f"v_mov_b32 v{VD+3}, 1.0")
    for i in range(4):
        A(f"v_mov_b32 v{VACC+i}, 0")
    A("s_waitcnt lgkmcnt(1)")
    for i in range(4):
        A(f"v_mov_b32 v{VIA+i}, v{VIAN+i}")
    A(f"s_cmp_eq_u32 s{S_RUN}, s{S_Q1}")
    A(f"s_setpc_b64 {s2(S_RET)}")
    L("K2_SLOW")
    if DBG: A("s_add_u32 s93, s93, 1")
    for i in range(4):
        A(f"v_mov_b32 v{VU+i}, 0")
    A(f"s_mov_b32 s{S_I}, s{S_RUN}")
    A(f"s_mov_b32 s15, 0x{NEGL:x}")
    A(f"v_lshrrev_b32 v{SL+4}, 1, v{V_LOFF}")
    L("K2_SLOWL")
    A(f"s_lshl_b32 s12, s{S_I}, 4")
    A(f"s_add_u32 s12, s12, {SI}")
    A(f"v_add_u32 v{SL}, s12, v{VG4}")
    A(f"ds_read_b32 v{SL+2}, v{SL}")
    A("s_movk_i32 s12, 0x4000")
    A(f"buffer_load_dwordx2 {v(VN,2)}, v{SL+4}, {s4(SRD_G)}, s12 offen")
    A(f"v_mov_b32 v{SL+1}, v{V_LOFF}")
    A("s_waitcnt lgkmcnt(0)")
    A(f"v_and_b32 v{SL}, 0xffff, v{SL+2}")
    A(f"buffer_load_dwordx4 {v(VT,4)}, {v(SL,2)}, {s4(SRD_T)}, 0 idxen offen")
    A(f"v_and_b32 v{SL+3}, 0xffff0000, v{SL+2}")
    A(f"v_lshlrev_b32 v{SL+5}, 7, v{SL}")
    A("s_waitcnt vmcnt(0)")
    A(f"v_lshlrev_b32 v{VS}, 16, v{VN}")
    A(f"v_and_b32 v{VS+1}, 0xffff0000, v{VN}")
    A(f"v_lshlrev_b32 v{VS+2}, 16, v{VN+1}")
    A(f"v_and_b32 v{VS+3}, 0xffff0000, v{VN+1}")
    for i in range(4):
        A(f"v_mul_f32 v{VS+i}, v{VS+i}, v{SL+3}")
    A(f"v_lshlrev_b64 {v(VH,2)}, 16, {v(VT,2)}")
    A(f"v_lshlrev_b64 {v(VH+2,2)}, 16, {v(VT+2,2)}")
    A("s_mov_b32 s13, 0")
    L("K2_SLOWK")
    A(f"buffer_load_dwordx2 {v(SL+2,2)}, v{SL+5}, {s4(SRD_X)}, s13 offen")
    A("s_lshl_b32 s14, s13, 6")
    A("s_add_u32 s14, s14, 0x2000")
    for j in range(4):
        A(f"buffer_load_dwordx2 {v(VN+2*j,2)}, v{SL+4}, {s4(SRD_G)}, s14 offen offset:{128*j}")
    A("s_waitcnt vmcnt(0)")
    for j in range(4):
        src = SL + 2 + (j >> 1)
        if j & 1: A(f"v_and_b32 v{VT}, 0xffff0000, v{src}")
        else: A(f"v_lshlrev_b32 v{VT}, 16, v{src}")
        for i in range(4):
            w = VN + 2*j + (i >> 1)
            if i & 1: A(f"v_and_b32 v{VT+1}, 0xffff0000, v{w}")
            else: A(f"v_lshlrev_b32 v{VT+1}, 16, v{w}")
            A(f"v_fma_f32 v{VS+i}, v{VT}, v{VT+1}, v{VS+i}")
    A("s_add_u32 s13, s13, 8")
    A("s_cmp_lt_u32 s13, 128")
    A("s_cbranch_scc1 K2_SLOWK")
    A(f"s_mul_i32 s12, s{S_CNODE}, {RS_}")
    A(f"v_add_u32 v{SL+2}, s12, v{V_LOFF}")
    A(f"ds_read_b128 {v(VT,4)}, v{SL+2} offset:{XAL}")
    A("s_waitcnt lgkmcnt(0)")
    for i in range(4):
        A(f"v_fma_f32 v{VS+i}, v{VS+i}, s15, v{VT+i}")
    for i in range(4):
        A(f"v_exp_f32 v{VS+i}, v{VS+i}")
    A("s_nop 0")
    for i in range(4):
        A(f"v_add_f32 v{VS+i}, 1.0, v{VS+i}")
    for i in range(4):
        A(f"v_rcp_f32 v{VS+i}, v{VS+i}")
    A("s_nop 0")
    for i in range(4):
        A(f"v_fma_f32 v{VU+i}, v{VH+i}, v{VS+i}, v{VU+i}")
    A(f"s_add_u32 s{S_I}, s{S_I}, 1")
    A(f"s_cmp_le_u32 s{S_I}, s{S_QB}")
    A("s_cbranch_scc1 K2_SLOWL")
    A(f"s_setpc_b64 {s2(S_RET2)}")
    L("K2_FALLBACK")
    A(f"s_mov_b32 s{S_MODE}, 1")
    A(f"s_mov_b32 s{S_WHI}, 0")
    A("s_branch K2_NEXTWIN")
    L("K2_MAINDONE")
    if PRIO: A("s_setprio 0")
    A("s_waitcnt lgkmcnt(0)")
    stamp(5)
    A("s_barrier")
    stamp(6)
    A(f"s_cmp_gt_u32 s{S_WAVE}, 12")
    A("s_cbranch_scc1 K2_NOACC")
    A(f"ds_read_b128 v[24:27], v{V_PADDR} offset:{AGG}")
    A(f"v_and_b32 v28, 15, v0")
    A(f"v_lshlrev_b32 v28, 2, v28")
    A(f"ds_read_b32 v29, v28 offset:{SPN}")
    A(f"v_lshrrev_b32 v31, 4, v0")
    A("s_waitcnt lgkmcnt(0)")
    A(f"v_pk_add_f32 {v(V_XU,2)}, {v(V_XU,2)}, v[24:25]")
    A(f"v_pk_add_f32 {v(V_XU+2,2)}, {v(V_XU+2,2)}, v[26:27]")
    A("v_lshrrev_b32 v30, 2, v29")
    A(f"v_cmp_eq_u32 vcc, s{S_WAVE}, v30")
    A("s_and_b32 s8, vcc_lo, 0xffff")
    A("s_cbranch_scc0 K2_NOSP")
    L("K2_SPL")
    A("s_ff1_i32_b32 s9, s8")
    A("s_bitset0_b32 s8, s9")
    A("v_readlane_b32 s10, v29, s9")
    A("s_lshl_b32 s9, s9, 8")
    A(f"v_add_u32 v30, s9, v{V_LOFF}")
    A(f"ds_read_b128 v[24:27], v30 offset:{SP}")
    A("v_cmp_eq_u32 vcc, s10, v31")
    A("s_waitcnt lgkmcnt(0)")
    A("s_mov_b64 exec, vcc")
    A(f"v_pk_add_f32 {v(V_XU,2)}, {v(V_XU,2)}, v[24:25]")
    A(f"v_pk_add_f32 {v(V_XU+2,2)}, {v(V_XU+2,2)}, v[26:27]")
    A("s_mov_b64 exec, -1")
    A("s_cmp_lg_u32 s8, 0")
    A("s_cbranch_scc1 K2_SPL")
    L("K2_NOSP")
    A(f"s_cmp_eq_u32 s{S_MODE}, 0")
    A("s_cbranch_scc1 K2_EPI")
    for i in range(4):
        A(f"v_mov_b32 v{24+i}, 0")
    A(f"ds_write_b128 v{V_PADDR}, v[24:27] offset:{AGG}")
    L("K2_NOACC")
    A(f"s_cmp_eq_u32 s{S_MODE}, 0")
    A("s_cbranch_scc1 K2_END")
    A(f"s_cmp_ge_u32 s{S_WHI}, {NCH}")
    A("s_cbranch_scc1 K2_EPI")
    L("K2_NEXTWIN")
    A(f"s_mov_b32 s{S_WLO}, s{S_WHI}")
    A(f"s_add_u32 s{S_WHI}, s{S_WHI}, 1")
    A("s_waitcnt vmcnt(0) lgkmcnt(0)")
    A("s_barrier")
    A("v_and_b32 v22, 127, v0")
    A("v_lshlrev_b32 v22, 2, v22")
    A("v_mov_b32 v48, 0")
    A(f"ds_write_b32 v22, v48 offset:{CNT}")
    A(f"v_cmp_eq_u32 vcc, s{S_WLO}, v{V_W}")
    A("s_nop 1")
    A(f"v_cndmask_b32 v{V_CE}, 0, v{V_CNT}, vcc")
    A("s_waitcnt lgkmcnt(0)")
    A("s_barrier")
    A("s_branch K2_WIN")
    L("K2_EPI")
    A(f"s_cmp_gt_u32 s{S_WAVE}, 12")
    A("s_cbranch_scc1 K2_END")
    srd(SRD_A, OUT_, OUT_+1, N*128)
    A(f"s_mov_b32 s4, 0x{NEGL:x}")
    A(f"s_mul_i32 s5, s2, {BN*128}")
    A("v_lshlrev_b32 v32, 3, v0")
    A(f"v_cmp_gt_u32 vcc, {BN*16}, v0")
    for i in range(4):
        A(f"v_mul_f32 v{28+i}, s4, v{V_XU+i}")
    for i in range(4):
        A(f"v_exp_f32 v{28+i}, v{28+i}")
    A("s_nop 0")
    for i in range(4):
        A(f"v_add_f32 v{28+i}, 1.0, v{28+i}")
    for i in range(4):
        A(f"v_rcp_f32 v{28+i}, v{28+i}")
    A("s_nop 0")
    for i in range(4):
        A(f"v_mul_f32 v{28+i}, v{V_XU+i}, v{28+i}")
    A("v_cvt_pk_bf16_f32 v24, v28, v29")
    A("v_cvt_pk_bf16_f32 v25, v30, v31")
    A("s_mov_b64 exec, vcc")
    A(f"buffer_store_dwordx2 v[24:25], v32, {s4(SRD_A)}, s5 offen")
    rstamp(9)
    dbg_dump(10, S_WAVE, "K2_DBGX", 17, 4, 0, 2, 1)
    L("K2_END")
    A("s_endpgm")

def desc(name, nv, ns=102):
    acc = (nv + 3) // 4 * 4
    return f""".p2align 6
.amdhsa_kernel {name}
  .amdhsa_next_free_vgpr {nv}
  .amdhsa_next_free_sgpr {ns}
  .amdhsa_accum_offset {acc}
  .amdhsa_group_segment_fixed_size 0
  .amdhsa_kernarg_size 80
  .amdhsa_user_sgpr_count 2
  .amdhsa_user_sgpr_kernarg_segment_ptr 1
  .amdhsa_system_sgpr_workgroup_id_x 1
.end_amdhsa_kernel
"""

hdr = f"""; EGC message passing: k1 = edge binning + source-node table, k2 = per-bucket gather/accumulate
; @launch kernel=k1_kernel grid=({NCH+NG+1},1,1) block=(512,1,1) lds={K1_LDS}
; @launch kernel=k2_kernel grid=({NB},1,1) block=(1024,1,1) lds={K2_LDS}
.amdgcn_target "amdgcn-amd-amdhsa--gfx950"
.text
"""
k1()
k2()
txt = hdr + "\n".join(out) + "\n" + '.section .rodata,"a"\n' + desc("k1_kernel", 108) + desc("k2_kernel", 124)
dst = sys.argv[1] if len(sys.argv) > 1 and not sys.argv[1].startswith("--") else "gather_scatter__edge_featured_mpnn_egc__graph.s"
open(dst, "w").write(txt)
print("wrote", dst, len(txt))
```

```python
import sys, struct, math

def opt0(name, default):
    r = [a[len(name)+3:] for a in sys.argv if a.startswith("--" + name + "=")]
    return r[0] if r else default
N = 12500; E = 800000
NB = 256; BN = 49
CH = 3200; NCH = 250
NG = 98
T_OFF = 0; REC_OFF = 8 << 20; OFF_OFF = 16 << 20; FR_OFF = 17 << 20
OG = int(opt0("og", "32")); OGL = OG.bit_length() - 1
OFF_GS = 256*OG*4
CS = 19840
FR_B = 16384; FR_S = 17408; FR_SIZE = 17408 + 512
LOG2E = math.log2(math.e)
def f32bits(x): return struct.unpack("<I", struct.pack("<f", x))[0]
NEGL = f32bits(-LOG2E)
KLOG = 2.0
POLY = [1.0/math.factorial(k) for k in range(1, 9)]
def opt(name, default):
    r = [a[len(name)+3:] for a in sys.argv if a.startswith("--" + name + "=")]
    return r[0] if r else default
def flag(name): return ("--" + name) in sys.argv

out = []
def A(s): out.append("    " + s)
def L(s): out.append(s + ":")

def srd(r, lo, hi, nrec, add=0):
    if add:
        A(f"s_add_u32 s{r}, s{lo}, 0x{add:x}")
        A(f"s_addc_u32 s{r+1}, s{hi}, 0")
        A(f"s_and_b32 s{r+1}, s{r+1}, 0xffff")
    else:
        A(f"s_mov_b32 s{r}, s{lo}")
        A(f"s_and_b32 s{r+1}, s{hi}, 0xffff")
    A(f"s_mov_b32 s{r+2}, 0x{nrec:x}")
    A(f"s_mov_b32 s{r+3}, 0x20000")

def v(r, n=1):
    return f"v{r}" if n == 1 else f"v[{r}:{r+n-1}]"
def s4(r): return f"s[{r}:{r+3}]"
def s2(r): return f"s[{r}:{r+1}]"

def scan64(x, op="v_add_u32_dpp"):
    for sh in (1, 2, 4, 8):
        A("s_nop 1")
        A(f"{op} v{x}, v{x}, v{x} row_shr:{sh} row_mask:0xf bank_mask:0xf")
    A("s_nop 1")
    A(f"{op} v{x}, v{x}, v{x} row_bcast:15 row_mask:0xa bank_mask:0xf")
    A("s_nop 1")
    A(f"{op} v{x}, v{x}, v{x} row_bcast:31 row_mask:0xc bank_mask:0xf")

DBG = flag("dbg")
def stamp(idx):
    if DBG:
        A("s_memtime s[98:99]")
        A("s_waitcnt lgkmcnt(0)")
        A(f"s_mov_b32 s{86+idx}, s98")
def rstamp(idx):
    if DBG:
        A("s_memrealtime s[98:99]")
        A("s_waitcnt lgkmcnt(0)")
        A(f"s_mov_b32 s{86+idx}, s98")
def dbg_dump(nst, wave_sgpr, lab, wg=0, nw=4, slot0=0, wsh=0, kidx=0):
    if DBG:
        A(f"s_cmp_lg_u32 s{wave_sgpr}, 0")
        A(f"s_cbranch_scc1 {lab}W")
        srd(96, WS_, WS_+1, 1 << 20, (18 << 20) + kidx*65536)
        A("s_getreg_b32 s3, hwreg(HW_REG_XCC_ID)")
        A("s_mov_b64 exec, 1")
        A("v_mov_b32 v4, s3")
        A("s_getreg_b32 s3, hwreg(HW_REG_HW_ID)")
        A("v_mov_b32 v5, s3")
        A("s_lshl_b32 s3, s2, 4")
        A("v_mov_b32 v1, s3")
        A("v_mov_b32 v2, s94")
        A("v_mov_b32 v3, s95")
        A("buffer_store_dwordx4 v[2:5], v1, s[96:99], 0 offen")
        L(lab + "W")
        A(f"s_cmp_lg_u32 s2, {wg}")
        A(f"s_cbranch_scc1 {lab}")
        A(f"s_and_b32 s3, s{wave_sgpr}, {(1<<wsh)-1}")
        A(f"s_cmp_lg_u32 s3, {(1<<wsh)-1}")
        A(f"s_cbranch_scc1 {lab}")
        A(f"s_lshr_b32 s3, s{wave_sgpr}, {wsh}")
        A(f"s_cmp_ge_u32 s3, {nw}")
        A(f"s_cbranch_scc1 {lab}")
        A("s_load_dwordx2 s[98:99], s[0:1], 64")
        A("s_waitcnt lgkmcnt(0)")
        srd(100-4, 98, 99, 256)
        A("s_mov_b64 exec, 1")
        A(f"s_mul_i32 s3, s3, 64")
        A("v_mov_b32 v1, s3")
        for i in range(nst):
            A(f"v_mov_b32 v2, s{86+i}")
            A(f"buffer_store_dword v2, v1, s[96:99], 0 offen offset:{4*i+64*slot0}")
        L(lab)
X_, E_, SRC_, DST_, U_, V_, G_, OUT_, WS_ = 16, 18, 20, 22, 24, 26, 28, 30, 32

def tr_lane_addr(dst, lane, h, tmp):
    A(f"v_bfe_u32 v{dst}, v{lane}, 2, 2")
    A(f"v_lshl_add_u32 v{dst}, v{h}, 3, v{dst}")
    A(f"v_lshlrev_b32 v{dst}, 7, v{dst}")
    A(f"v_and_b32 v{tmp}, 1, v{lane}")
    A(f"v_lshl_add_u32 v{dst}, v{tmp}, 5, v{dst}")
    A(f"v_bfe_u32 v{tmp}, v{lane}, 4, 1")
    A(f"v_lshl_add_u32 v{dst}, v{tmp}, 4, v{dst}")
    A(f"v_bfe_u32 v{tmp}, v{lane}, 1, 1")
    A(f"v_lshl_add_u32 v{dst}, v{tmp}, 3, v{dst}")

K1_LDS = 16384 + 8*4608
SC = " sc1"
def k1():
    out.append(".globl k1_kernel")
    out.append(".p2align 8")
    out.append(".type k1_kernel,@function")
    L("k1_kernel")
    A(f"s_cmp_gt_u32 s2, {NCH+NG}")
    A("s_cbranch_scc1 K1_END")
    stamp(0)
    rstamp(8)
    A("s_load_dwordx16 s[16:31], s[0:1], 0")
    A("s_load_dwordx2 s[32:33], s[0:1], 72")
    A("v_lshrrev_b32 v1, 6, v0")
    A("v_lshlrev_b32 v3, 4, v0")
    A("v_readfirstlane_b32 s7, v1")
    A(f"s_cmp_eq_u32 s2, {NCH+NG}")
    A("s_cbranch_scc1 K1_FRAG")
    GF = flag("gemmfirst")
    if GF:
        A(f"s_cmp_lt_u32 s2, {NG}")
        A("s_cbranch_scc1 K1_GEMM")
        A(f"s_sub_u32 s34, s2, {NG}")
    else:
        A(f"s_cmp_ge_u32 s2, {NCH}")
        A("s_cbranch_scc1 K1_GEMM")
        A(f"s_mov_b32 s34, s2")
    HIST, BASE, STAGE = 0, 1024, 2048
    A("s_cmp_eq_u32 s7, 7")
    A("s_cbranch_scc1 K1_END")
    A("v_and_b32 v1, 0xff, v0")
    A("v_lshlrev_b32 v1, 2, v1")
    A("v_mov_b32 v2, 0")
    A("ds_write_b32 v1, v2")
    A("v_lshlrev_b32 v4, 3, v0")
    A(f"s_mul_i32 s3, s34, {CH*4}")
    A(f"s_add_u32 s4, s3, {CH*2}")
    A(f"s_mul_i32 s5, s34, {CH*2}")
    A(f"s_add_u32 s6, s5, {CH}")
    A(f"v_cmp_gt_u32 vcc, {CH//8}, v0")
    A("s_movk_i32 s10, -49")
    A("v_mov_b32 v5, 1")
    A("s_waitcnt lgkmcnt(0)")
    srd(36, DST_, DST_+1, E*4)
    A("s_mov_b64 s[8:9], vcc")
    A("s_mov_b64 exec, vcc")
    A("buffer_load_dwordx4 v[8:11], v3, s[36:39], s3 offen")
    A("buffer_load_dwordx4 v[12:15], v3, s[36:39], s4 offen")
    srd(40, SRC_, SRC_+1, E*4)
    A("buffer_load_dwordx4 v[16:19], v3, s[40:43], s3 offen")
    A("buffer_load_dwordx4 v[20:23], v3, s[40:43], s4 offen")
    srd(44, E_, E_+1, E*2)
    A("buffer_load_dwordx2 v[24:25], v4, s[44:47], s5 offen")
    A("buffer_load_dwordx2 v[26:27], v4, s[44:47], s6 offen")
    srd(48, WS_, WS_+1, NCH*CS, REC_OFF)
    srd(52, WS_, WS_+1, 256*1024, OFF_OFF)
    A("s_barrier")
    stamp(1)
    for half in range(2):
        A(f"s_waitcnt vmcnt({5-half})")
        if half == 0: stamp(2)
        for i in range(4*half, 4*half+4):
            A(f"v_mul_u32_u24 v{28+i}, 5350, v{8+i}")
            A(f"v_lshrrev_b32 v{60+i}, 18, v{28+i}")
            A(f"v_lshlrev_b32 v{28+i}, 2, v{60+i}")
            A(f"ds_add_rtn_u32 v{36+i}, v{28+i}, v5")
            A(f"v_lshlrev_b32 v{8+i}, 2, v{8+i}")
            A(f"v_mad_i32_i24 v{8+i}, v{28+i}, s10, v{8+i}")
    A("s_mov_b32 s11, 0xffff0000")
    A("s_movk_i32 s13, 21846")
    for i in range(8):
        A(f"s_waitcnt lgkmcnt({7-i})")
        A(f"v_mul_u32_u24 v{44+i}, s13, v{36+i}")
        A(f"v_lshrrev_b32 v{44+i}, 16, v{44+i}")
        A(f"v_mad_u32_u24 v{52+i}, v{44+i}, 13, v{36+i}")
        A(f"v_add_u32 v{44+i}, v{44+i}, v{36+i}")
    stamp(3)
    A("s_barrier")
    stamp(4)
    A("s_mov_b64 exec, -1")
    A("v_and_b32 v1, 63, v0")
    A("v_lshlrev_b32 v1, 4, v1")
    A(f"ds_read_b128 v[60:63], v1 offset:{HIST}")
    A("s_waitcnt lgkmcnt(0)")
    for i in range(4):
        A(f"v_add_u32 v{80+i}, 2, v{60+i}")
    for i in range(4):
        A(f"v_mul_u32_u24 v{80+i}, s13, v{80+i}")
    for i in range(4):
        A(f"v_lshrrev_b32 v{80+i}, 16, v{80+i}")
    A("v_add_u32 v65, v80, v81")
    A("v_add_u32 v66, v65, v82")
    A("v_add_u32 v67, v66, v83")
    A("v_mov_b32 v68, v67")
    scan64(68)
    A("s_nop 0")
    A("v_readlane_b32 s14, v68, 63")
    A("v_sub_u32 v68, v68, v67")
    A("v_add_u32 v69, v68, v80")
    A("v_add_u32 v70, v68, v65")
    A("v_add_u32 v71, v68, v66")
    A(f"v_mov_b32 v6, {STAGE}")
    for i in range(4):
        A(f"v_lshl_add_u32 v{72+i}, v{68+i}, 4, v6")
    A(f"ds_write_b128 v1, v[72:75] offset:{BASE}")
    A("s_waitcnt vmcnt(0)")
    A("s_cmp_lg_u32 s7, 6")
    A("s_cbranch_scc1 K1_NOOFF")
    for i in range(4):
        A(f"v_lshl_or_b32 v{76+i}, v{68+i}, 16, v{60+i}")
    A(f"s_lshl_b32 s12, s34, {OGL+2}")
    A(f"v_lshrrev_b32 v2, {OGL+2}, v1")
    A(f"v_and_b32 v80, {OG*4-1}, v1")
    A(f"v_lshl_or_b32 v2, v2, {OGL+10}, v80")
    A(f"buffer_store_dwordx4 v[76:79], v2, s[52:55], s12 offen{SC}")
    L("K1_NOOFF")
    A("s_add_u32 s14, s14, 7")
    A("s_and_b32 s14, s14, -8")
    A("s_lshl_b32 s14, s14, 4")
    A("s_sub_u32 s14, s14, 14336")
    A("v_cmp_gt_u32 vcc, s14, v3")
    A("s_waitcnt lgkmcnt(0)")
    A("s_nop 0")
    A("v_cndmask_b32 v7, 0.5, v3, vcc")
    A("s_mov_b64 exec, s[8:9]")
    for i in range(8):
        A(f"ds_read_b32 v{60+i}, v{28+i} offset:{BASE}")
    for i in range(4):
        A(f"v_lshl_or_b32 v{16+2*i}, v{24+i}, 16, v{16+2*i}")
        A(f"v_and_or_b32 v{17+2*i}, v{24+i}, s11, v{17+2*i}")
    for i in range(8):
        A(f"s_waitcnt lgkmcnt({7+i})")
        A(f"v_lshl_add_u32 v{44+i}, v{44+i}, 2, v{60+i}")
        A(f"v_add_u32 v{52+i}, v{52+i}, v{60+i}")
        A(f"ds_write_b32 v{44+i}, v{16+i}")
        A(f"ds_write_b8 v{52+i}, v{8+i} offset:12")
    A(f"s_mul_i32 s12, s34, {CS}")
    A(f"s_add_u32 s13, s12, 7168")
    A(f"s_add_u32 s14, s12, 14336")
    A("s_mov_b64 exec, -1")
    A("s_waitcnt lgkmcnt(0)")
    A("s_barrier")
    stamp(5)
    for k in range(3):
        A(f"ds_read_b128 v[{8+4*k}:{11+4*k}], v3 offset:{STAGE+7168*k}")
    for k in range(3):
        A(f"s_waitcnt lgkmcnt({2-k})")
        A(f"buffer_store_dwordx4 v[{8+4*k}:{11+4*k}], v{7 if k == 2 else 3}, s[48:51], s{12+k} offen{SC}")
    if DBG: A("s_waitcnt vmcnt(0)")
    stamp(6)
    rstamp(9)
    dbg_dump(10, 7, "K1_DBGB", 217, 2, 0, 0)
    A("s_endpgm")
    L("K1_GEMM")
    if GF: A(f"s_mov_b32 s3, s2")
    else: A(f"s_sub_u32 s3, s2, {NCH}")
    A("s_and_b32 s4, s7, 3")
    A("s_lshr_b32 s6, s7, 2")
    A("v_and_b32 v1, 63, v0")
    A("v_and_b32 v2, 31, v1")
    A("v_lshrrev_b32 v4, 5, v1")
    A("s_lshl_b32 s8, s3, 7")
    A("s_lshl_b32 s9, s4, 5")
    A("s_add_u32 s8, s8, s9")
    A("v_add_u32 v2, s8, v2")
    A("v_lshlrev_b32 v5, 7, v2")
    A("v_lshl_add_u32 v5, v4, 4, v5")
    A("s_waitcnt lgkmcnt(0)")
    srd(36, G_, G_+1, 129*128)
    A("s_movk_i32 s10, 0x2000")
    A("buffer_load_dwordx4 v[8:11], v3, s[36:39], s10 offen")
    srd(40, V_, V_+1, 8192)
    A("buffer_load_dwordx4 v[12:15], v3, s[40:43], 0 offen")
    srd(48, X_, X_+1, N*128)
    for sidx in range(4):
        A(f"buffer_load_dwordx4 v[{24+4*sidx}:{27+4*sidx}], v5, s[48:51], 0 offen offset:{32*sidx}")
    srd(52, WS_, WS_+1, N*256, T_OFF)
    tr_lane_addr(6, 1, 4, 7)
    A("s_lshl_b32 s11, s6, 6")
    A("v_add_u32 v6, s11, v6")
    A("s_mul_i32 s11, s7, 4608")
    A("s_add_u32 s11, s11, 16384")
    A("v_and_b32 v104, 31, v1")
    A("v_mul_u32_u24 v104, 144, v104")
    A("v_lshl_add_u32 v104, v4, 6, v104")
    A("v_add_u32 v104, s11, v104")
    A("v_lshrrev_b32 v105, 3, v1")
    A("v_and_b32 v106, 7, v1")
    A("v_lshlrev_b32 v106, 4, v106")
    A("v_add_u32 v2, s8, v105")
    A("v_mul_u32_u24 v105, 144, v105")
    A("v_add3_u32 v105, v105, v106, s11")
    A("v_lshl_add_u32 v2, v2, 8, v106")
    A("s_lshl_b32 s11, s6, 7")
    A("v_add_u32 v2, s11, v2")
    for k in range(2):
        A(f"s_waitcnt vmcnt({5-k})")
        A(f"ds_write_b128 v3, v[{8+4*k}:{11+4*k}] offset:{8192*k}")
    A("s_waitcnt lgkmcnt(0)")
    stamp(1)
    A("s_barrier")
    stamp(2)
    AX, AH, DX, DH = 40, 56, 72, 88
    for sidx in range(4):
        for u in range(2):
            A(f"ds_read_b64_tr_b16 v[{AX+4*sidx+2*u}:{AX+4*sidx+2*u+1}], v6 offset:{sidx*2048+u*512}")
        for u in range(2):
            A(f"ds_read_b64_tr_b16 v[{AH+4*sidx+2*u}:{AH+4*sidx+2*u+1}], v6 offset:{8192+sidx*2048+u*512}")
    A("s_waitcnt vmcnt(0)")
    for sidx in range(4):
        A(f"s_waitcnt lgkmcnt({14-4*sidx})")
        cx = "0" if sidx == 0 else v(DX, 16)
        A(f"v_mfma_f32_32x32x16_bf16 {v(DX,16)}, {v(AX+4*sidx,4)}, {v(24+4*sidx,4)}, {cx}")
        A(f"s_waitcnt lgkmcnt({12-4*sidx})")
        ch = "0" if sidx == 0 else v(DH, 16)
        A(f"v_mfma_f32_32x32x16_bf16 {v(DH,16)}, {v(AH+4*sidx,4)}, {v(24+4*sidx,4)}, {ch}")
    stamp(3)
    A(f"s_mov_b32 s40, 0x{NEGL:x}")
    A("s_mov_b32 s41, 0x00800000")
    A("s_mov_b32 s42, 0x7fff0000")
    A("s_mov_b32 s43, 0x80000000")
    A("s_nop 7")
    A("s_nop 3")
    for i in range(16):
        A(f"v_fma_f32 v{DX+i}, s40, v{DX+i}, {KLOG}")
    for i in range(16):
        A(f"v_exp_f32 v{DX+i}, v{DX+i}")
    def comp(dst, B, lo, t1, t2):
        A(f"v_max_f32 v{t1}, abs(v{B}), s41")
        A(f"v_and_or_b32 v{t2}, v{B}, s43, v{lo}")
        A(f"v_sub_u32 v{t1}, v{t1}, v{lo}")
        A(f"v_add_u32 v{t1}, 0x8000, v{t1}")
        A(f"v_bfi_b32 v{dst}, s42, v{t1}, v{t2}")
    for grp in range(2):
        ps = [4*grp + j for j in range(4)]
        T1 = [8, 9, 10, 11]; T2 = [12, 13, 14, 15]; LO = [16, 17, 18, 19]
        for j, p in enumerate(ps):
            A(f"v_cvt_pk_bf16_f32 v{LO[j]}, v{DH+2*p}, 0")
        for j, p in enumerate(ps):
            comp(DX+2*p, DX+2*p, LO[j], T1[j], T2[j])
        for j, p in enumerate(ps):
            A(f"v_lshrrev_b32 v{LO[j]}, 16, v{DX+2*p}")
        for j, p in enumerate(ps):
            comp(DH+2*p+1, DH+2*p+1, LO[j], T1[j], T2[j])
        for j, p in enumerate(ps):
            A(f"v_lshrrev_b32 v{LO[j]}, 16, v{DH+2*p+1}")
        for j, p in enumerate(ps):
            comp(DX+2*p+1, DX+2*p+1, LO[j], T1[j], T2[j])
        for k in range(2):
            kk = 2*grp + k
            A(f"ds_write_b128 v104, v[{DX+4*kk}:{DX+4*kk+3}] offset:{16*kk}")
    A("s_waitcnt lgkmcnt(0)")
    for i in range(4):
        A(f"ds_read_b128 v[{8+4*i}:{11+4*i}], v105 offset:{8*144*i}")
    for i in range(4):
        A(f"s_waitcnt lgkmcnt({3-i})")
        A(f"buffer_store_dwordx4 v[{8+4*i}:{11+4*i}], v2, s[52:55], 0 offen offset:{2048*i if i < 2 else 2048*(i-2)}{SC}")
        if i == 1: A("v_add_u32 v2, 4096, v2")
    stamp(4)
    if DBG: A("s_waitcnt vmcnt(0)")
    stamp(5)
    stamp(6)
    rstamp(9)
    dbg_dump(10, 7, "K1_DBGG", 50 if GF else 300, 2, 2, 0)
    A("s_endpgm")
    L("K1_FRAG")
    A("v_and_b32 v1, 63, v0")
    A("v_lshrrev_b32 v4, 5, v1")
    A("v_and_b32 v5, 15, v1")
    A("v_lshrrev_b32 v6, 4, v1")
    A("v_lshlrev_b32 v6, 1, v6")
    A("v_lshl_add_u32 v5, v5, 3, v6")
    A("s_waitcnt lgkmcnt(0)")
    srd(36, G_, G_+1, 129*128)
    A("buffer_load_dwordx4 v[8:11], v3, s[36:39], 0 offen")
    srd(40, U_, U_+1, 8192)
    A("buffer_load_dwordx4 v[12:15], v3, s[40:43], 0 offen")
    A("s_movk_i32 s4, 0x4000")
    A("buffer_load_ushort v20, v5, s[36:39], s4 offen")
    srd(52, WS_, WS_+1, FR_SIZE, FR_OFF)
    tr_lane_addr(6, 1, 4, 7)
    A("s_lshr_b32 s4, s7, 1")
    A("s_and_b32 s5, s7, 1")
    A("s_lshl_b32 s4, s4, 13")
    A("s_lshl_b32 s5, s5, 6")
    A("s_add_u32 s4, s4, s5")
    A("v_add_u32 v6, s4, v6")
    A("v_lshlrev_b32 v2, 4, v1")
    for k in range(2):
        A(f"s_waitcnt vmcnt({2-k})")
        A(f"ds_write_b128 v3, v[{8+4*k}:{11+4*k}] offset:{8192*k}")
    A("s_waitcnt lgkmcnt(0)")
    A("s_barrier")
    A("s_cmp_eq_u32 s7, 4")
    A("s_cbranch_scc1 K1_COEF")
    A("s_cmp_gt_u32 s7, 4")
    A("s_cbranch_scc1 K1_END")
    for sidx in range(4):
        for u in range(2):
            A(f"ds_read_b64_tr_b16 v[{40+4*sidx+2*u}:{40+4*sidx+2*u+1}], v6 offset:{sidx*2048+u*512}")
    A("s_lshl_b32 s4, s7, 12")
    for sidx in range(4):
        A(f"s_waitcnt lgkmcnt({6-2*sidx})")
        A(f"buffer_store_dwordx4 v[{40+4*sidx}:{43+4*sidx}], v2, s[52:55], s4 offen offset:{1024*sidx}{SC}")
    A("s_endpgm")
    L("K1_COEF")
    A("s_waitcnt vmcnt(0)")
    A("v_lshlrev_b32 v20, 16, v20")
    A("v_and_b32 v60, 0x7fffffff, v20")
    scan64(60, "v_max_u32_dpp")
    A("s_nop 1")
    A("v_readlane_b32 s5, v60, 63")
    A("s_lshr_b32 s4, s5, 23")
    A("s_max_u32 s4, s4, 1")
    A("s_lshl_b32 s8, s4, 23")
    A("s_cmp_gt_u32 s4, 253")
    A("s_cselect_b32 s8, 0x7fc00000, s8")
    A("s_min_u32 s4, s4, 253")
    A("s_sub_u32 s4, 254, s4")
    A("s_lshl_b32 s4, s4, 23")
    A("s_or_b32 s4, s4, 0x80000000")
    A("v_mov_b32 v70, s5")
    A("v_mul_f32 v60, s4, v20")
    A("v_mul_f32 v70, s4, v70")
    A("v_mul_f32 v70, v70, v70")
    A("v_max_f32 v70, 1.0, v70")
    A("v_rcp_f32 v71, v70")
    A("v_mov_b32 v70, s8")
    for k in range(1, 8):
        A(f"v_mul_f32 v{60+k}, v{60+k-1}, v60")
    for k in range(1, 8):
        A(f"v_mul_f32 v{60+k}, 0x{f32bits(POLY[k]):x}, v{60+k}")
    for k in range(8):
        A(f"v_cvt_f16_f32 v{60+k}, v{60+k}")
    for k in range(4):
        A(f"v_pack_b32_f16 v{40+k}, v{60+2*k}, v{61+2*k}")
    A(f"s_movk_i32 s4, {FR_B}")
    A(f"buffer_store_dwordx4 v[40:43], v2, s[52:55], s4 offen{SC}")
    A("v_lshlrev_b32 v2, 3, v1")
    A(f"buffer_store_dwordx2 v[70:71], v2, s[52:55], s4 offen offset:{FR_S-FR_B}{SC}")
    L("K1_END")
    A("s_endpgm")


RS_ = 272
AGG, IA, XAL = 0, 52*RS_, 104*RS_
CNT = 156*RS_; SPN = CNT + 512; ZR = CNT + 1024
SI = CNT + 2048
CAP = 4096
PW = SI + (CAP + 256)*4
XT = PW
SLOT = PW + CAP*16 + 2560
SS = 516
SP = SLOT + 26112
K2_LDS = SP + 4096
assert PW % 16 == 0 and PW < 65536 and SLOT % 16 == 0 and K2_LDS <= 163840 and BN*SS + 8 <= 25600
DUMMY = 0x7b00

def k2():
    out.append(".globl k2_kernel")
    out.append(".p2align 8")
    out.append(".type k2_kernel,@function")
    L("k2_kernel")
    A(f"s_cmp_ge_u32 s2, {NB}")
    A("s_cbranch_scc1 K2_END")
    stamp(0)
    rstamp(8)
    if DBG: A("s_mov_b32 s93, 0")
    A("s_load_dwordx16 s[16:31], s[0:1], 0")
    A("s_load_dwordx2 s[32:33], s[0:1], 72")
    A("s_and_b32 s3, s2, 7")
    A("s_lshr_b32 s2, s2, 3")
    A("s_lshl_b32 s3, s3, 5")
    A("s_or_b32 s2, s2, s3")
    S_WAVE = 7
    SRD_T, SRD_REC, SRD_A, SRD_G, SRD_X = 36, 40, 44, 48, 52
    S_W, S_OFFB, S_MODE, S_ESC = 56, 57, 58, 59
    S_M = 60
    S_NE, S_NE2 = 60, 62
    S_QR, S_DEL, S_NN, S_NST = 64, 65, 66, 67
    S_Q, S_Q1, S_RUN, S_QB, S_REM, S_END, S_BIG, S_CNODE = 74, 75, 76, 77, 78, 79, 80, 81
    S_RET = 82
    S_I, S_NODE = 84, 85
    S_THR, S_RET2 = 6, 34
    V_LANE, V_LOFF, V_PADDR, V_FOUR, V_RADDR, V_SUB3, V_CB, V_W, V_OFF = 1, 2, 3, 4, 5, 6, 7, 8, 9
    V_B = 10
    V_SC = 14
    V_END, V_BQ, V_DEL = 18, 19, 20
    V_R = 24
    V_LA = 36
    V_A = 48
    V_XD = 52
    GA, GD, V_X = 64, 80, 96
    A("v_lshrrev_b32 v22, 6, v0")
    A(f"v_and_b32 v{V_LANE}, 63, v0")
    A(f"v_readfirstlane_b32 s{S_WAVE}, v22")
    A(f"v_lshrrev_b32 v{V_W}, 2, v0")
    A(f"v_lshlrev_b32 v19, {OGL+2}, v{V_W}")
    A(f"v_cmp_gt_u32 vcc, {NCH}, v{V_W}")
    A(f"s_lshr_b32 s3, s2, {OGL}")
    A(f"s_lshl_b32 s3, s3, {OGL+10}")
    A(f"s_and_b32 s4, s2, {OG-1}")
    A(f"s_lshl2_add_u32 s{S_OFFB}, s4, s3")
    A(f"v_cndmask_b32 v19, 0.5, v19, vcc")
    A("v_and_b32 v22, 15, v0")
    A(f"v_lshlrev_b32 v{V_LOFF}, 4, v22")
    A(f"v_lshlrev_b32 v22, 4, v{V_LANE}")
    A(f"v_lshlrev_b32 v21, 3, v{V_LANE}")
    A(f"s_lshr_b32 s9, s{S_WAVE}, 1")
    A("s_lshl_b32 s5, s9, 12")
    A(f"s_movk_i32 s4, {FR_B}")
    A(f"s_mul_i32 s8, s2, {BN*128}")
    A(f"s_lshl_b32 s9, s{S_WAVE}, 10")
    A("s_add_u32 s8, s8, s9")
    A("s_sub_u32 s8, s8, 8192")
    A(f"v_mul_u32_u24 v{V_CB}, {SS}, v{V_LANE}")
    A(f"v_add_u32 v{V_CB}, {SLOT}, v{V_CB}")
    A("v_cmp_gt_u32 vcc, 64, v0")
    A("v_and_b32 v23, 511, v0")
    A("v_lshlrev_b32 v23, 2, v23")
    A(f"v_cndmask_b32 v48, 0, v{V_CB}, vcc")
    A("v_cmp_gt_u32 vcc, 512, v0")
    for i in range(4):
        A(f"v_mov_b32 v{56+i}, 0x{DUMMY:x}")
    A("v_lshlrev_b32 v49, 4, v0")
    A(f"v_add_u32 v49, {SLOT}, v49")
    A("s_mov_b64 exec, vcc")
    A(f"ds_write_b32 v23, v48 offset:{CNT}")
    A("s_mov_b64 exec, -1")
    A("v_cmp_gt_u32 vcc, 576, v0")
    A("ds_write_b128 v49, v[56:59]")
    A("s_mov_b64 exec, vcc")
    A("ds_write_b128 v49, v[56:59] offset:16384")
    A("s_mov_b64 exec, -1")
    A("s_waitcnt lgkmcnt(0)")
    srd(SRD_A, WS_, WS_+1, 256*1024, OFF_OFF)
    A(f"buffer_load_dword v{V_OFF}, v19, {s4(SRD_A)}, s{S_OFFB} offen")
    srd(12, WS_, WS_+1, FR_SIZE, FR_OFF)
    srd(SRD_X, X_, X_+1, N*128)
    A(f"s_cmp_ge_u32 s{S_WAVE}, 8")
    A("s_cbranch_scc1 K2_LX")
    for sidx in range(4):
        A(f"buffer_load_dwordx4 {v(GA+4*sidx,4)}, v22, s[12:15], s5 offen offset:{1024*sidx}")
    A("s_branch K2_LJ")
    L("K2_LX")
    A(f"buffer_load_dwordx4 {v(V_XD,4)}, v22, {s4(SRD_X)}, s8 offen")
    L("K2_LJ")
    A(f"buffer_load_dwordx4 {v(V_B,4)}, v22, s[12:15], s4 offen")
    A(f"buffer_load_dwordx2 {v(V_SC,2)}, v21, s[12:15], s4 offen offset:{FR_S-FR_B}")
    srd(SRD_G, G_, G_+1, 129*128)
    srd(SRD_T, WS_, WS_+1, N, T_OFF)
    A(f"s_or_b32 s{SRD_T+1}, s{SRD_T+1}, 0x1000000")
    srd(SRD_REC, WS_, WS_+1, NCH*CS, REC_OFF)
    A(f"s_mov_b32 s{S_MODE}, 0")
    A(f"v_lshrrev_b32 v{V_PADDR}, 4, v0")
    A(f"v_mul_u32_u24 v{V_PADDR}, {RS_}, v{V_PADDR}")
    A(f"v_add_u32 v{V_PADDR}, v{V_PADDR}, v{V_LOFF}")
    A(f"v_and_b32 v23, 3, v0")
    A(f"v_mul_u32_u24 v{V_SUB3}, 3, v23")
    A(f"v_mul_u32_u24 v22, {CS//16}, v{V_W}")
    A(f"v_add_u32 v22, v22, v23")
    A(f"v_mov_b32 v{V_FOUR}, 4")
    A(f"v_mov_b32 v51, 0.5")
    A(f"s_cmp_ge_u32 s{S_WAVE}, 8")
    A("s_cbranch_scc1 K2_W2")
    A("s_waitcnt vmcnt(6)")
    A("s_branch K2_W3")
    L("K2_W2")
    A("s_waitcnt vmcnt(3)")
    L("K2_W3")
    stamp(1)
    A(f"v_and_b32 v23, 0xffff, v{V_OFF}")
    A(f"v_lshrrev_b32 v{V_RADDR}, 16, v{V_OFF}")
    A(f"v_sub_u32 v23, v23, v{V_SUB3} clamp")
    A(f"v_add_lshl_u32 v{V_RADDR}, v{V_RADDR}, v22, 4")
    for r in range(3):
        A(f"v_cmp_lt_u32 {s2(S_M+6*r)}, {12*r}, v23")
    for r in range(3):
        A(f"v_cndmask_b32 v{V_A+r}, v51, v{V_RADDR}, {s2(S_M+6*r)}")
        A(f"buffer_load_dwordx4 {v(V_R+4*r,4)}, v{V_A+r}, {s4(SRD_REC)}, 0 offen offset:{64*r}")
    for r in range(3):
        for j in (1, 2):
            A(f"v_cmp_lt_u32 {s2(S_M+6*r+2*j)}, {12*r+j}, v23")
    A(f"s_cmp_lt_u32 s{S_WAVE}, 8")
    A("s_cbranch_scc1 K2_GEMM")
    A(f"v_lshrrev_b32 v56, 3, v0")
    A(f"v_mul_u32_u24 v56, 144, v56")
    A(f"v_and_b32 v57, 7, v0")
    A(f"v_lshl_add_u32 v56, v57, 4, v56")
    A("s_waitcnt vmcnt(5)")
    A(f"ds_write_b128 v56, {v(V_XD,4)} offset:{XT-64*144}")
    A("s_waitcnt lgkmcnt(0)")
    A("s_barrier")
    A("s_branch K2_RANK")
    L("K2_GEMM")
    A(f"s_and_b32 s8, s{S_WAVE}, 1")
    A("s_lshl_b32 s8, s8, 5")
    A(f"v_and_b32 v56, 31, v{V_LANE}")
    A(f"v_lshrrev_b32 v57, 5, v{V_LANE}")
    A(f"v_add_u32 v56, s8, v56")
    A(f"v_mul_u32_u24 v58, 144, v56")
    A(f"v_lshl_add_u32 v58, v57, 4, v58")
    A(f"s_lshr_b32 s4, s{S_WAVE}, 2")
    A(f"s_bfe_u32 s5, s{S_WAVE}, 0x10001")
    A(f"v_mul_u32_u24 v59, {RS_}, v56")
    A("v_lshl_add_u32 v59, v57, 6, v59")
    A("s_lshl_b32 s9, s5, 7")
    A("v_add_u32 v59, s9, v59")
    A(f"v_cmp_gt_u32 s[10:11], {BN}, v56")
    A("s_barrier")
    for sidx in range(4):
        A(f"ds_read_b128 {v(V_X+4*sidx,4)}, v58 offset:{XT+32*sidx}")
    A("s_waitcnt vmcnt(5)")
    for sidx in range(4):
        A(f"s_waitcnt lgkmcnt({3-sidx})")
        c = "0" if sidx == 0 else v(GD, 16)
        A(f"v_mfma_f32_32x32x16_bf16 {v(GD,16)}, {v(GA+4*sidx,4)}, {v(V_X+4*sidx,4)}, {c}")
    A(f"s_mov_b32 s8, 0x{NEGL:x}")
    A(f"s_mov_b32 s9, 0x{f32bits(3.3):x}")
    A("s_nop 7")
    A("s_nop 3")
    A("s_cmp_lg_u32 s4, 0")
    A("s_mov_b64 exec, s[10:11]")
    A("s_cbranch_scc1 K2_GU")
    for i in range(16):
        A(f"v_mul_f32 v{GD+i}, s8, v{GD+i}")
    for kk in range(4):
        A(f"ds_write_b128 v59, {v(GD+4*kk,4)} offset:{XAL+16*kk}")
    for i in range(16):
        A(f"v_sub_f32 v{GA+i}, {KLOG}, v{GD+i}")
    A(f"v_max_f32 v60, v{GD}, v{GD+1}")
    for i in range(7):
        A(f"v_max3_f32 v60, v60, v{GD+2+2*i}, v{GD+3+2*i}")
    A("v_cmp_ge_f32 vcc, s9, v60")
    for i in range(16):
        A(f"v_exp_f32 v{GA+i}, v{GA+i}")
    A(f"v_cndmask_b32 v{GA}, -1, v{GA}, vcc")
    for kk in range(4):
        A(f"ds_write_b128 v59, {v(GA+4*kk,4)} offset:{IA+16*kk}")
    A("s_branch K2_GJ")
    L("K2_GU")
    for kk in range(4):
        A(f"ds_write_b128 v59, {v(GD+4*kk,4)} offset:{AGG+16*kk}")
    L("K2_GJ")
    A("s_mov_b64 exec, -1")
    L("K2_RANK")
    def nodebyte(dst, src, j):
        if j == 0: A(f"v_and_b32 v{dst}, 0xff, v{src}")
        else: A(f"v_bfe_u32 v{dst}, v{src}, {8*j}, 8")
    A(f"s_mov_b32 s8, {SLOT+25592}")
    for r in range(2):
        A(f"s_waitcnt vmcnt({2-r})")
        for j in range(3):
            nodebyte(V_LA+3*r+j, V_R+4*r+3, j)
        for j in range(3):
            A(f"s_mov_b64 exec, {s2(S_M+6*r+2*j)}")
            A(f"ds_add_rtn_u32 v{V_LA+3*r+j}, v{V_LA+3*r+j}, v{V_FOUR} offset:{CNT}")
        A("s_mov_b64 exec, -1")
    for k in range(6):
        r, j = divmod(k, 3)
        A("s_waitcnt lgkmcnt(5)")
        A(f"s_mov_b64 exec, {s2(S_M+6*r+2*j)}")
        A(f"v_min_u32 v{V_LA+k}, s8, v{V_LA+k}")
        A(f"ds_write_b32 v{V_LA+k}, v{V_R+4*r+j}")
    A("s_mov_b64 exec, -1")
    A("s_waitcnt vmcnt(0)")
    A(f"v_readfirstlane_b32 s{S_ESC}, v{V_SC}")
    A(f"v_readfirstlane_b32 s{S_THR}, v{V_SC+1}")
    A(f"s_cmp_eq_u64 {s2(S_M+12)}, 0")
    A("s_cbranch_scc1 K2_NOR3")
    for j in range(3):
        nodebyte(V_LA+6+j, V_R+11, j)
    for j in range(3):
        A(f"s_mov_b64 exec, {s2(S_M+12+2*j)}")
        A(f"ds_add_rtn_u32 v{V_LA+6+j}, v{V_LA+6+j}, v{V_FOUR} offset:{CNT}")
    A("s_waitcnt lgkmcnt(0)")
    for j in range(3):
        A(f"s_mov_b64 exec, {s2(S_M+12+2*j)}")
        A(f"v_min_u32 v{V_LA+6+j}, s8, v{V_LA+6+j}")
        A(f"ds_write_b32 v{V_LA+6+j}, v{V_R+8+j}")
    A("s_mov_b64 exec, -1")
    A("v_cmpx_lt_u32 vcc, 36, v23")
    A("v_mov_b32 v56, 0")
    A("v_mov_b32 v57, 0x100000")
    A(f"ds_write_b32 v56, v57 offset:{CNT+252}")
    A("s_mov_b64 exec, -1")
    L("K2_NOR3")
    A(f"v_lshlrev_b32 v52, 2, v{V_LANE}")
    A("s_waitcnt lgkmcnt(0)")
    stamp(2)
    A("s_barrier")
    stamp(3)
    A(f"ds_read_b32 v53, v52 offset:{CNT}")
    A("s_waitcnt lgkmcnt(0)")
    A(f"v_sub_u32 v53, v53, v{V_CB}")
    A("v_add_u32 v56, 12, v53")
    A("v_lshrrev_b32 v56, 4, v56")
    A(f"v_mov_b32 v{V_END}, v56")
    scan64(V_END)
    A("v_cmp_lt_u32 vcc, 32, v56")
    A(f"v_cmp_ne_u32 {s2(S_NE)}, 0, v56")
    A(f"v_readlane_b32 s12, v{V_END}, 63")
    A(f"v_sub_u32 v{V_BQ}, v{V_END}, v56")
    A(f"v_lshlrev_b32 v57, 4, v{V_BQ}")
    A(f"v_sub_u32 v{V_DEL}, v{V_CB}, v57")
    A("s_cbranch_vccnz K2_GENERAL")
    A(f"s_cmp_gt_u32 s12, {CAP//4}")
    A("s_cbranch_scc1 K2_GENERAL")
    L("K2_SETUP")
    IX = 24
    AR = 32
    PR = 48
    DS = 56
    VIA, VIAN, VN, VD, VACC, VS, VH, VU, VT = 72, 76, 80, 84, 88, 92, 96, 100, 104
    VRA, VRI, VINC, VDST, VG4, VNX, VREC, VP4, VLQ, VDL = 108, 109, 110, 111, 112, 113, 114, 115, 116, 117
    SL = 118
    VPREV, VPN = 124, 125
    S_PAR = 9
    A(f"s_mul_i32 s13, s12, s{S_WAVE}")
    A(f"s_add_u32 s14, s13, s12")
    A(f"s_lshr_b32 s{S_Q}, s13, 4")
    A(f"s_lshr_b32 s{S_Q1}, s14, 4")
    A(f"v_cmp_lt_u32 vcc, s{S_Q}, v{V_END}")
    A(f"s_mov_b32 s4, 0x7fffffff")
    A(f"v_writelane_b32 v{V_BQ}, s4, 63")
    A(f"s_lshl_b32 s15, s{S_WAVE}, 2")
    A(f"v_mov_b32 v{VU}, s15")
    A(f"v_mov_b32 v{VU+1}, 0xffff")
    A(f"ds_write_b32 v{VU}, v{VU+1} offset:{SPN}")
    A(f"s_cmp_eq_u32 s{S_Q}, s{S_Q1}")
    A("s_cbranch_scc1 K2_MAINDONE")
    A(f"s_and_b64 {s2(S_NE)}, {s2(S_NE)}, vcc")
    A(f"s_ff1_i32_b64 s{S_CNODE}, {s2(S_NE)}")
    A(f"s_bitset0_b64 {s2(S_NE)}, s{S_CNODE}")
    A(f"s_mov_b64 {s2(S_NE2)}, {s2(S_NE)}")
    A(f"s_bitset1_b64 {s2(S_NE2)}, 63")
    A(f"s_ff1_i32_b64 s{S_NN}, {s2(S_NE2)}")
    A(f"v_readlane_b32 s{S_DEL}, v{V_DEL}, s{S_CNODE}")
    A(f"v_readlane_b32 s{S_NST}, v{V_BQ}, s{S_NN}")
    A(f"v_lshrrev_b32 v{VLQ}, 2, v{V_LANE}")
    A(f"s_lshl_b32 s4, s{S_Q}, 4")
    A(f"v_lshl_add_u32 v{VP4}, v{V_LANE}, 2, s4")
    A(f"s_mov_b32 s{S_QR}, s{S_Q}")
    mapn = [0]
    def mapread():
        t = mapn[0]; mapn[0] += 1
        A(f"v_add_u32 v{VDL}, s{S_DEL}, v{VP4}")
        A(f"s_sub_u32 s4, s{S_NST}, s{S_QR}")
        A("s_cmp_ge_u32 s4, 16")
        A(f"s_cbranch_scc1 K2_MD{t}")
        L(f"K2_ML{t}")
        A(f"v_readlane_b32 s{S_DEL}, v{V_DEL}, s{S_NN}")
        A(f"s_bitset0_b64 {s2(S_NE2)}, s{S_NN}")
        A(f"s_ff1_i32_b64 s{S_NN}, {s2(S_NE2)}")
        A(f"v_readlane_b32 s{S_NST}, v{V_BQ}, s{S_NN}")
        A(f"v_cmpx_le_u32 vcc, s4, v{VLQ}")
        A(f"v_add_u32 v{VDL}, s{S_DEL}, v{VP4}")
        A("s_mov_b64 exec, -1")
        A(f"s_sub_u32 s4, s{S_NST}, s{S_QR}")
        A("s_cmp_lt_u32 s4, 16")
        A(f"s_cbranch_scc1 K2_ML{t}")
        L(f"K2_MD{t}")
        A(f"ds_read_b32 v{VREC}, v{VDL}")
        A(f"s_add_u32 s{S_QR}, s{S_QR}, 16")
    def powers():
        A(f"ds_write_b32 v{VP4}, v{VREC} offset:{SI}")
        A(f"v_and_b32 v{VT+1}, 0xffff0000, v{VREC}")
        A(f"v_mul_f32 v{VT+1}, s{S_ESC}, v{VT+1}")
        A(f"v_mul_f32 v{VT+2}, v{VT+1}, v{VT+1}")
        A(f"v_cmp_ge_f32 vcc, s{S_THR}, v{VT+2}")
        A(f"v_cvt_pkrtz_f16_f32 v{VT}, v{VT+1}, v{VT+2}")
        A(f"v_lshlrev_b32 v{VDL}, 2, v{VP4}")
        A(f"v_add_u32 v{VP4}, 0x100, v{VP4}")
        A(f"v_cndmask_b32 v{VT}, -1, v{VT}, vcc")
        for j in range(3):
            A(f"v_pk_mul_f16 v{VT+j+1}, v{VT+j}, v{VT} op_sel:[0,1] op_sel_hi:[1,1]")
        A(f"ds_write_b128 v{VDL}, {v(VT,4)} offset:{PW}")
    mapread()
    A(f"v_lshrrev_b32 v{VG4}, 4, v{V_LANE}")
    A(f"v_and_b32 v{VT}, 3, v{V_LANE}")
    A(f"v_cmp_eq_u32 vcc, v{VT}, v{VG4}")
    A(f"v_mov_b32 v{VT+1}, 512")
    A(f"v_bfe_u32 v{VT}, v{V_LANE}, 2, 2")
    A(f"v_cndmask_b32 v{VINC}, 0, v{VT+1}, vcc")
    A(f"s_lshl_b32 s4, s{S_Q}, 6")
    A(f"s_add_u32 s4, s4, {PW}")
    A(f"v_lshl_add_u32 v{VT}, v{VT}, 4, s4")
    A(f"v_mov_b32 v{VT+1}, {ZR}")
    A(f"v_cndmask_b32 v{VRA}, v{VT+1}, v{VT}, vcc")
    A(f"v_lshlrev_b32 v{VG4}, 2, v{VG4}")
    A(f"s_lshl_b32 s4, s{S_Q}, 4")
    A(f"s_add_u32 s4, s4, {SI}")
    A(f"v_add_u32 v{VRI}, s4, v{VG4}")
    for k in range(4):
        A(f"v_mov_b32 v{IX+2*k+1}, v{V_LOFF}")
    A(f"s_mov_b32 s{S_PAR}, 0")
    A(f"v_readlane_b32 s{S_END}, v{V_END}, s{S_CNODE}")
    A(f"v_readlane_b32 s5, v{V_BQ}, s{S_CNODE}")
    A(f"s_mul_i32 s4, s{S_CNODE}, {RS_}")
    A(f"v_add_u32 v{VNX}, s4, v{V_LOFF}")
    A(f"v_add_u32 v{VDST}, v{VNX}, v{VG4}")
    A(f"v_mov_b32 v{VPN}, v{VDST}")
    A(f"s_cmp_lt_u32 s5, s{S_Q}")
    A("s_cbranch_scc0 K2_NOSHARE")
    A(f"s_lshl_b32 s4, s{S_WAVE}, 8")
    A(f"s_add_u32 s4, s4, {SP}")
    A(f"v_add3_u32 v{VDST}, v{V_LOFF}, v{VG4}, s4")
    A(f"v_mov_b32 v{VU+1}, s{S_CNODE}")
    A(f"v_mov_b32 v{VPN}, {ZR}")
    A(f"ds_write_b32 v{VU}, v{VU+1} offset:{SPN}")
    L("K2_NOSHARE")
    A(f"ds_read_b32 v{VPREV}, v{VPN}")
    A(f"ds_read_b128 {v(VIA,4)}, v{VNX} offset:{IA}")
    A(f"s_min_u32 s{S_REM}, s{S_END}, s{S_Q1}")
    A(f"s_sub_u32 s{S_REM}, s{S_REM}, s{S_Q}")
    A(f"s_mov_b32 s{S_RUN}, s{S_Q}")
    A(f"s_mov_b32 s{S_BIG}, 0x{f32bits(2.0**118):x}")
    A("s_waitcnt lgkmcnt(2)")
    A(f"ds_write_b32 v{VP4}, v{VREC} offset:{SI}")
    for k in range(4):
        A(f"ds_read_u16 v{IX+2*k}, v{VRI} offset:{16*k}")
    n0 = len(out)
    powers()
    del out[n0]
    tail = out[n0:]; del out[n0:]
    out.extend(tail[:5])
    for k in range(3):
        A(f"s_waitcnt lgkmcnt({3-k})")
        A(f"buffer_load_dwordx4 {v(DS+4*k,4)}, {v(IX+2*k,2)}, {s4(SRD_T)}, 0 idxen offen")
    out.extend(tail[5:])
    for k in range(3):
        A(f"ds_read_b128 {v(AR+4*k,4)}, v{VRA} offset:{64*k}")
    for k in range(4, 6):
        A(f"ds_read_u16 v{IX+2*(k%4)}, v{VRI} offset:{16*k}")
    mapread()
    for i in range(4):
        A(f"v_mov_b32 v{VN+i}, 0")
        A(f"v_mov_b32 v{VD+i}, 1.0")
        A(f"v_mov_b32 v{VACC+i}, 0")
    A("s_waitcnt lgkmcnt(5)")
    A(f"v_mfma_f32_16x16x32_f16 {v(PR,4)}, {v(AR,4)}, {v(V_B,4)}, 1.0")
    A("s_waitcnt lgkmcnt(0)")
    stamp(4)
    PRIO = not flag("noprio")
    if PRIO: A("s_setprio 3")
    L("K2_LOOP")
    for k in range(8):
        d3 = DS + 4*((k+3) % 4); d0 = DS + 4*(k % 4)
        pc = PR + 4*(k % 2); pn = PR + 4*((k+1) % 2)
        A(f"ds_read_u16 v{IX+2*((k+2)%4)}, v{VRI} offset:{16*(k+6)}")
        A(f"ds_read_b128 {v(AR+4*((k+3)%4),4)}, v{VRA} offset:{64*(k+3)}")
        A("s_waitcnt lgkmcnt(4)")
        A(f"buffer_load_dwordx4 {v(d3,4)}, {v(IX+2*((k+3)%4),2)}, {s4(SRD_T)}, 0 idxen offen")
        A(f"v_mfma_f32_16x16x32_f16 {v(pn,4)}, {v(AR+4*((k+1)%4),4)}, {v(V_B,4)}, 1.0")
        A("s_waitcnt vmcnt(3)")
        A(f"v_lshlrev_b64 {v(VH,2)}, 16, {v(d0,2)}")
        A(f"v_lshlrev_b64 {v(VH+2,2)}, 16, {v(d0+2,2)}")
        for j in (0, 2):
            A(f"v_pk_fma_f32 {v(VS+j,2)}, {v(d0+j,2)}, {v(pc+j,2)}, {v(VIA+j,2)}")
        for j in (0, 2):
            A(f"v_pk_mul_f32 {v(VU+j,2)}, {v(VH+j,2)}, {v(VD+j,2)}")
        for j in (0, 2):
            A(f"v_pk_fma_f32 {v(VN+j,2)}, {v(VN+j,2)}, {v(VS+j,2)}, {v(VU+j,2)}")
            A(f"v_pk_mul_f32 {v(VD+j,2)}, {v(VD+j,2)}, {v(VS+j,2)}")
        A(f"s_cmp_eq_u32 s{S_REM}, {k+1}")
        A(f"s_cbranch_scc1 K2_FL{k}")
        L(f"K2_BK{k}")
    A(f"v_add_u32 v{VRI}, 128, v{VRI}")
    A(f"v_add_u32 v{VRA}, v{VINC}, v{VRA}")
    A(f"s_add_u32 s{S_Q}, s{S_Q}, 8")
    A(f"s_sub_u32 s{S_REM}, s{S_REM}, 8")
    A(f"s_xor_b32 s{S_PAR}, s{S_PAR}, 1")
    A("s_cbranch_scc0 K2_NOPW")
    powers()
    mapread()
    L("K2_NOPW")
    if PRIO:
        TH = [int(x) for x in opt("prth", "24,16,8").split(",")]
        A(f"s_sub_u32 s3, s{S_Q1}, s{S_Q}")
        A(f"s_cmp_gt_i32 s3, {TH[0]}")
        A("s_cbranch_scc1 K2_PRX")
        A("s_setprio 2")
        A(f"s_cmp_gt_i32 s3, {TH[1]}")
        A("s_cbranch_scc1 K2_PRX")
        A("s_setprio 1")
        A(f"s_cmp_gt_i32 s3, {TH[2]}")
        A("s_cbranch_scc1 K2_PRX")
        A("s_setprio 0")
        L("K2_PRX")
    A(f"s_sub_u32 s3, s{S_Q}, s{S_RUN}")
    A("s_cmp_lt_u32 s3, 16")
    A("s_cbranch_scc1 K2_LOOP")
    def resolve(tag):
        for j in (0, 2):
            A(f"v_pk_mul_f32 {v(VN+j,2)}, {v(VN+j,2)}, {v(VIA+j,2)}")
        A(f"v_pk_add_f32 {v(VH,2)}, {v(VD,2)}, {v(VD+2,2)}")
        for j in (0, 2):
            A(f"v_pk_mul_f32 {v(VU+j,2)}, {v(VN+j,2)}, {v(VT+j,2)}")
        A(f"v_pk_fma_f32 {v(VH,2)}, {v(VU,2)}, 0, {v(VH,2)} op_sel_hi:[1,0,1]")
        A(f"v_pk_fma_f32 {v(VH,2)}, {v(VU+2,2)}, 0, {v(VH,2)} op_sel_hi:[1,0,1]")
        A(f"v_add_f32 v{VH}, v{VH}, v{VH+1}")
        A(f"v_cmp_ngt_f32 vcc, s{S_BIG}, v{VH}")
        A(f"s_cbranch_vccz K2_FOK{tag}")
        A(f"s_call_b64 {s2(S_RET2)}, K2_SLOW")
        L(f"K2_FOK{tag}")
        for j in (0, 2):
            A(f"v_pk_add_f32 {v(VACC+j,2)}, {v(VACC+j,2)}, {v(VU+j,2)}")
    for i in range(4):
        A(f"v_rcp_f32 v{VT+i}, v{VD+i}")
    A(f"s_sub_u32 s{S_QB}, s{S_Q}, 1")
    resolve("R")
    for i in range(4):
        A(f"v_mov_b32 v{VN+i}, 0")
        A(f"v_mov_b32 v{VD+i}, 1.0")
    A(f"s_mov_b32 s{S_RUN}, s{S_Q}")
    A("s_branch K2_LOOP")
    for k in range(8):
        L(f"K2_FL{k}")
        A(f"s_call_b64 {s2(S_RET)}, K2_FLUSH")
        A(f"s_cbranch_scc0 K2_BK{k}")
        A(f"s_branch K2_MAINDONE")
    L("K2_FLUSH")
    for i in range(4):
        A(f"v_rcp_f32 v{VT+i}, v{VD+i}")
    A(f"s_ff1_i32_b64 s{S_NODE}, {s2(S_NE)}")
    A(f"s_max_i32 s{S_NODE}, s{S_NODE}, 0")
    A(f"s_bitset0_b64 {s2(S_NE)}, s{S_NODE}")
    A(f"s_mul_i32 s8, s{S_NODE}, {RS_}")
    A(f"v_add_u32 v{VNX}, s8, v{V_LOFF}")
    A(f"ds_read_b128 {v(VIAN,4)}, v{VNX} offset:{IA}")
    A(f"v_add_u32 v{VNX}, v{VNX}, v{VG4}")
    A(f"ds_read_b32 v{VPN}, v{VNX}")
    A(f"v_readlane_b32 s{S_END}, v{V_END}, s{S_NODE}")
    A(f"s_add_u32 s{S_QB}, s{S_Q}, s{S_REM}")
    A(f"s_sub_u32 s{S_QB}, s{S_QB}, 1")
    resolve("F")
    A(f"v_mov_b32 v{VN}, 0")
    A(f"v_mov_b32 v{VN+1}, 0")
    A(f"v_permlane32_swap_b32 v{VACC}, v{VACC+2}")
    A(f"v_permlane32_swap_b32 v{VACC+1}, v{VACC+3}")
    A(f"v_mov_b32 v{VN+2}, 0")
    A(f"v_pk_add_f32 {v(VU,2)}, {v(VACC,2)}, {v(VACC+2,2)}")
    A(f"v_mov_b32 v{VN+3}, 0")
    A(f"v_mov_b32 v{VD}, 1.0")
    A(f"v_permlane16_swap_b32 v{VU}, v{VU+1}")
    A(f"v_mov_b32 v{VD+1}, 1.0")
    A(f"v_add_f32 v{VU}, v{VU}, v{VU+1}")
    A(f"v_add_f32 v{VU}, v{VU}, v{VPREV}")
    A(f"ds_write_b32 v{VDST}, v{VU}")
    A(f"s_add_u32 s{S_RUN}, s{S_QB}, 1")
    A(f"s_min_u32 s{S_REM}, s{S_END}, s{S_Q1}")
    A(f"s_sub_u32 s{S_REM}, s{S_REM}, s{S_Q}")
    A(f"s_mov_b32 s{S_CNODE}, s{S_NODE}")
    A(f"v_mov_b32 v{VDST}, v{VNX}")
    A(f"v_mov_b32 v{VD+2}, 1.0")
    A(f"v_mov_b32 v{VD+3}, 1.0")
    for i in range(4):
        A(f"v_mov_b32 v{VACC+i}, 0")
    A("s_waitcnt lgkmcnt(1)")
    for i in range(4):
        A(f"v_mov_b32 v{VIA+i}, v{VIAN+i}")
    A(f"v_mov_b32 v{VPREV}, v{VPN}")
    A(f"s_cmp_eq_u32 s{S_RUN}, s{S_Q1}")
    A(f"s_setpc_b64 {s2(S_RET)}")
    L("K2_SLOW")
    if DBG: A("s_add_u32 s93, s93, 1")
    for i in range(4):
        A(f"v_mov_b32 v{VU+i}, 0")
    A(f"s_mov_b32 s{S_I}, s{S_RUN}")
    A(f"s_mov_b32 s15, 0x{NEGL:x}")
    A(f"v_lshrrev_b32 v{SL+4}, 1, v{V_LOFF}")
    L("K2_SLOWL")
    A(f"s_lshl_b32 s12, s{S_I}, 4")
    A(f"s_add_u32 s12, s12, {SI}")
    A(f"v_add_u32 v{SL}, s12, v{VG4}")
    A(f"ds_read_b32 v{SL+2}, v{SL}")
    A("s_movk_i32 s12, 0x4000")
    A(f"buffer_load_dwordx2 {v(VN,2)}, v{SL+4}, {s4(SRD_G)}, s12 offen")
    A(f"v_mov_b32 v{SL+1}, v{V_LOFF}")
    A("s_waitcnt lgkmcnt(0)")
    A(f"v_and_b32 v{SL}, 0xffff, v{SL+2}")
    A(f"buffer_load_dwordx4 {v(VT,4)}, {v(SL,2)}, {s4(SRD_T)}, 0 idxen offen")
    A(f"v_and_b32 v{SL+3}, 0xffff0000, v{SL+2}")
    A(f"v_lshlrev_b32 v{SL+5}, 7, v{SL}")
    A("s_waitcnt vmcnt(0)")
    A(f"v_lshlrev_b32 v{VS}, 16, v{VN}")
    A(f"v_and_b32 v{VS+1}, 0xffff0000, v{VN}")
    A(f"v_lshlrev_b32 v{VS+2}, 16, v{VN+1}")
    A(f"v_and_b32 v{VS+3}, 0xffff0000, v{VN+1}")
    for i in range(4):
        A(f"v_mul_f32 v{VS+i}, v{VS+i}, v{SL+3}")
    A(f"v_lshlrev_b64 {v(VH,2)}, 16, {v(VT,2)}")
    A(f"v_lshlrev_b64 {v(VH+2,2)}, 16, {v(VT+2,2)}")
    A("s_mov_b32 s13, 0")
    L("K2_SLOWK")
    A(f"buffer_load_dwordx2 {v(SL+2,2)}, v{SL+5}, {s4(SRD_X)}, s13 offen")
    A("s_lshl_b32 s14, s13, 6")
    A("s_add_u32 s14, s14, 0x2000")
    for j in range(4):
        A(f"buffer_load_dwordx2 {v(VN+2*j,2)}, v{SL+4}, {s4(SRD_G)}, s14 offen offset:{128*j}")
    A("s_waitcnt vmcnt(0)")
    for j in range(4):
        src = SL + 2 + (j >> 1)
        if j & 1: A(f"v_and_b32 v{VT}, 0xffff0000, v{src}")
        else: A(f"v_lshlrev_b32 v{VT}, 16, v{src}")
        for i in range(4):
            w = VN + 2*j + (i >> 1)
            if i & 1: A(f"v_and_b32 v{VT+1}, 0xffff0000, v{w}")
            else: A(f"v_lshlrev_b32 v{VT+1}, 16, v{w}")
            A(f"v_fma_f32 v{VS+i}, v{VT}, v{VT+1}, v{VS+i}")
    A("s_add_u32 s13, s13, 8")
    A("s_cmp_lt_u32 s13, 128")
    A("s_cbranch_scc1 K2_SLOWK")
    A(f"s_mul_i32 s12, s{S_CNODE}, {RS_}")
    A(f"v_add_u32 v{SL+2}, s12, v{V_LOFF}")
    A(f"ds_read_b128 {v(VT,4)}, v{SL+2} offset:{XAL}")
    A("s_waitcnt lgkmcnt(0)")
    for i in range(4):
        A(f"v_fma_f32 v{VS+i}, v{VS+i}, s15, v{VT+i}")
    for i in range(4):
        A(f"v_exp_f32 v{VS+i}, v{VS+i}")
    A("s_nop 0")
    for i in range(4):
        A(f"v_add_f32 v{VS+i}, 1.0, v{VS+i}")
    for i in range(4):
        A(f"v_rcp_f32 v{VS+i}, v{VS+i}")
    A("s_nop 0")
    for i in range(4):
        A(f"v_fma_f32 v{VU+i}, v{VH+i}, v{VS+i}, v{VU+i}")
    A(f"s_add_u32 s{S_I}, s{S_I}, 1")
    A(f"s_cmp_le_u32 s{S_I}, s{S_QB}")
    A("s_cbranch_scc1 K2_SLOWL")
    A(f"s_setpc_b64 {s2(S_RET2)}")
    L("K2_GENERAL")
    A(f"s_mov_b32 s{S_MODE}, 1")
    A(f"s_mov_b32 s{S_W}, -1")
    A("s_branch K2_NEXTWIN")
    L("K2_MAINDONE")
    if PRIO: A("s_setprio 0")
    A("s_waitcnt lgkmcnt(0)")
    stamp(5)
    A("s_barrier")
    stamp(6)
    A(f"s_cmp_gt_u32 s{S_WAVE}, 12")
    A("s_cbranch_scc1 K2_NOACC")
    A(f"ds_read_b128 v[24:27], v{V_PADDR} offset:{AGG}")
    A(f"v_lshrrev_b32 v28, 2, v{V_LOFF}")
    A(f"ds_read_b32 v29, v28 offset:{SPN}")
    A(f"v_lshrrev_b32 v31, 4, v0")
    A("s_waitcnt lgkmcnt(0)")
    A("v_lshrrev_b32 v30, 2, v29")
    A(f"v_cmp_eq_u32 vcc, s{S_WAVE}, v30")
    A("s_and_b32 s8, vcc_lo, 0xffff")
    A("s_cbranch_scc0 K2_NOSP")
    L("K2_SPL")
    A("s_ff1_i32_b32 s9, s8")
    A("s_bitset0_b32 s8, s9")
    A("v_readlane_b32 s10, v29, s9")
    A("s_lshl_b32 s9, s9, 8")
    A(f"s_add_u32 s9, s9, {SP}")
    A(f"v_add_u32 v30, s9, v{V_LOFF}")
    A(f"ds_read_b128 v[32:35], v30")
    A("v_cmp_eq_u32 vcc, s10, v31")
    A("s_waitcnt lgkmcnt(0)")
    A("s_mov_b64 exec, vcc")
    A(f"v_pk_add_f32 v[24:25], v[24:25], v[32:33]")
    A(f"v_pk_add_f32 v[26:27], v[26:27], v[34:35]")
    A("s_mov_b64 exec, -1")
    A("s_cmp_lg_u32 s8, 0")
    A("s_cbranch_scc1 K2_SPL")
    L("K2_NOSP")
    A(f"s_cmp_eq_u32 s{S_MODE}, 0")
    A("s_cbranch_scc1 K2_EPI")
    A(f"ds_write_b128 v{V_PADDR}, v[24:27] offset:{AGG}")
    A("s_waitcnt lgkmcnt(0)")
    L("K2_NOACC")
    A(f"s_cmp_eq_u32 s{S_MODE}, 0")
    A("s_cbranch_scc1 K2_END")
    L("K2_NEXTWIN")
    A(f"s_add_u32 s{S_W}, s{S_W}, 1")
    A(f"s_cmp_ge_u32 s{S_W}, {NCH}")
    A("s_cbranch_scc1 K2_LASTWIN")
    A(f"s_lshl_b32 s4, s{S_W}, {OGL+2}")
    A("v_mov_b32 v22, s4")
    A(f"buffer_load_dword v{V_OFF}, v22, {s4(SRD_A)}, s{S_OFFB} offen")
    A("s_waitcnt vmcnt(0)")
    A(f"v_readfirstlane_b32 s4, v{V_OFF}")
    A("s_and_b32 s5, s4, 0xffff")
    A("s_cbranch_scc0 K2_NEXTWIN")
    A("s_lshr_b32 s4, s4, 16")
    A(f"s_mul_i32 s8, s{S_W}, {CS//16}")
    A("s_add_u32 s4, s4, s8")
    A(f"v_add_lshl_u32 v{V_RADDR}, s4, v0, 4")
    A("v_mul_u32_u24 v22, 3, v0")
    A("v_sub_u32 v23, s5, v22 clamp")
    A("v_mov_b32 v51, 0.5")
    A(f"v_mov_b32 v{V_FOUR}, 4")
    A("s_movk_i32 s8, 3072")
    A("s_movk_i32 s9, 3073")
    A("s_movk_i32 s10, 3074")
    for j in range(3):
        A(f"v_cmp_lt_u32 {s2(S_M+2*j)}, {j}, v23")
        A(f"v_cmp_lt_u32 {s2(S_M+6+2*j)}, s{8+j}, v23")
    A("s_movk_i32 s4, 0x4000")
    for r in range(2):
        A(f"v_cndmask_b32 v{V_A+r}, v51, v{V_RADDR}, {s2(S_M+6*r)}")
        A(f"buffer_load_dwordx4 {v(V_R+4*r,4)}, v{V_A+r}, {s4(SRD_REC)}, {'s4' if r else '0'} offen")
    A("s_barrier")
    A(f"v_lshlrev_b32 v52, 2, v{V_LANE}")
    A("v_mov_b32 v53, 0")
    A(f"ds_write_b32 v52, v53 offset:{CNT}")
    A("s_waitcnt vmcnt(0) lgkmcnt(0)")
    A("s_barrier")
    for k in range(6):
        r, j = divmod(k, 3)
        nodebyte(V_LA+k, V_R+4*r+3, j)
    for k in range(6):
        A(f"s_mov_b64 exec, {s2(S_M+2*k)}")
        A(f"ds_add_rtn_u32 v{56+k}, v{V_LA+k}, v{V_FOUR} offset:{CNT}")
    A("s_mov_b64 exec, -1")
    A("s_waitcnt lgkmcnt(0)")
    A("s_barrier")
    A(f"ds_read_b32 v53, v52 offset:{CNT}")
    A("s_waitcnt lgkmcnt(0)")
    A("v_add_u32 v54, 12, v53")
    A("v_lshrrev_b32 v54, 4, v54")
    A(f"v_mov_b32 v{V_END}, v54")
    scan64(V_END)
    A(f"v_cmp_ne_u32 s[10:11], 0, v54")
    A(f"v_mov_b32 v{V_DEL}, {SLOT}")
    A(f"v_readlane_b32 s12, v{V_END}, 63")
    A(f"v_sub_u32 v{V_BQ}, v{V_END}, v54")
    A(f"v_lshl_add_u32 v55, v{V_BQ}, 4, v{V_DEL}")
    for k in range(6):
        A(f"ds_bpermute_b32 v{64+k}, v{V_LA+k}, v55")
    A(f"v_mov_b32 v62, 0x{DUMMY:x}")
    A("v_add_u32 v63, v55, v53")
    A("v_lshlrev_b32 v54, 4, v54")
    A("v_sub_u32 v54, v54, v53")
    A("s_waitcnt lgkmcnt(0)")
    for k in range(6):
        r, j = divmod(k, 3)
        A(f"s_mov_b64 exec, {s2(S_M+2*k)}")
        A(f"v_add_u32 v{64+k}, v{64+k}, v{56+k}")
        A(f"ds_write_b32 v{64+k}, v{V_R+4*r+j}")
    A("s_mov_b64 exec, -1")
    for j in range(3):
        A(f"v_cmpx_lt_u32 vcc, {4*j}, v54")
        A(f"ds_write_b32 v63, v62 offset:{4*j}")
    A("s_mov_b64 exec, -1")
    A(f"s_mov_b64 {s2(S_NE)}, s[10:11]")
    A("s_waitcnt lgkmcnt(0)")
    A("s_barrier")
    A("s_branch K2_SETUP")
    L("K2_LASTWIN")
    A(f"s_cmp_gt_u32 s{S_WAVE}, 12")
    A("s_cbranch_scc1 K2_END")
    A(f"ds_read_b128 v[24:27], v{V_PADDR} offset:{AGG}")
    L("K2_EPI")
    srd(SRD_A, OUT_, OUT_+1, N*128)
    A(f"s_mov_b32 s4, 0x{NEGL:x}")
    A(f"s_mul_i32 s5, s2, {BN*128}")
    A("v_lshlrev_b32 v32, 3, v0")
    A(f"v_cmp_gt_u32 vcc, {BN*16}, v0")
    A("s_waitcnt lgkmcnt(0)")
    for i in range(4):
        A(f"v_mul_f32 v{28+i}, s4, v{24+i}")
    for i in range(4):
        A(f"v_exp_f32 v{28+i}, v{28+i}")
    A("s_nop 0")
    for i in range(4):
        A(f"v_add_f32 v{28+i}, 1.0, v{28+i}")
    for i in range(4):
        A(f"v_rcp_f32 v{28+i}, v{28+i}")
    A("s_nop 0")
    for i in range(4):
        A(f"v_mul_f32 v{28+i}, v{24+i}, v{28+i}")
    A("v_cvt_pk_bf16_f32 v24, v28, v29")
    A("v_cvt_pk_bf16_f32 v25, v30, v31")
    A("s_mov_b64 exec, vcc")
    A(f"buffer_store_dwordx2 v[24:25], v32, {s4(SRD_A)}, s5 offen")
    rstamp(9)
    dbg_dump(10, S_WAVE, "K2_DBGX", 17, 4, 0, 2, 1)
    L("K2_END")
    A("s_endpgm")

def desc(name, nv, ns=102):
    acc = (nv + 3) // 4 * 4
    return f""".p2align 6
.amdhsa_kernel {name}
  .amdhsa_next_free_vgpr {nv}
  .amdhsa_next_free_sgpr {ns}
  .amdhsa_accum_offset {acc}
  .amdhsa_group_segment_fixed_size 0
  .amdhsa_kernarg_size 80
  .amdhsa_user_sgpr_count 2
  .amdhsa_user_sgpr_kernarg_segment_ptr 1
  .amdhsa_system_sgpr_workgroup_id_x 1
.end_amdhsa_kernel
"""

hdr = f"""; EGC message passing: k1 = edge binning + source-node table, k2 = per-bucket gather/accumulate
; @launch kernel=k1_kernel grid=({NCH+NG+1},1,1) block=(512,1,1) lds={K1_LDS}
; @launch kernel=k2_kernel grid=({NB},1,1) block=(1024,1,1) lds={K2_LDS}
.amdgcn_target "amdgcn-amd-amdhsa--gfx950"
.text
"""
k1()
k2()
txt = hdr + "\n".join(out) + "\n" + '.section .rodata,"a"\n' + desc("k1_kernel", 108) + desc("k2_kernel", 126)
dst = sys.argv[1] if len(sys.argv) > 1 and not sys.argv[1].startswith("--") else "gather_scatter__edge_featured_mpnn_egc__graph.s"
open(dst, "w").write(txt)
print("wrote", dst, len(txt))
```

```python
import sys, struct, math

def opt0(name, default):
    r = [a[len(name)+3:] for a in sys.argv if a.startswith("--" + name + "=")]
    return r[0] if r else default
N = 12500; E = 800000
NB = 256; BN = 49
CH = 5000; NCH = 160
NG = 79
B1 = 640
T_OFF = 0; REC_OFF = 8 << 20; OFF_OFF = 16 << 20; FR_OFF = 17 << 20
OG = int(opt0("og", "32")); OGL = OG.bit_length() - 1
OFF_GS = 256*OG*4
CS = 29440
FR_B = 16384; FR_S = 17408; FR_SIZE = 17408 + 512
LOG2E = math.log2(math.e)
def f32bits(x): return struct.unpack("<I", struct.pack("<f", x))[0]
NEGL = f32bits(-LOG2E)
KLOG = 2.0
POLY = [1.0/math.factorial(k) for k in range(1, 9)]
def opt(name, default):
    r = [a[len(name)+3:] for a in sys.argv if a.startswith("--" + name + "=")]
    return r[0] if r else default
def flag(name): return ("--" + name) in sys.argv

out = []
def A(s): out.append("    " + s)
def L(s): out.append(s + ":")

def srd(r, lo, hi, nrec, add=0):
    if add:
        A(f"s_add_u32 s{r}, s{lo}, 0x{add:x}")
        A(f"s_addc_u32 s{r+1}, s{hi}, 0")
        A(f"s_and_b32 s{r+1}, s{r+1}, 0xffff")
    else:
        A(f"s_mov_b32 s{r}, s{lo}")
        A(f"s_and_b32 s{r+1}, s{hi}, 0xffff")
    A(f"s_mov_b32 s{r+2}, 0x{nrec:x}")
    A(f"s_mov_b32 s{r+3}, 0x20000")

def v(r, n=1):
    return f"v{r}" if n == 1 else f"v[{r}:{r+n-1}]"
def s4(r): return f"s[{r}:{r+3}]"
def s2(r): return f"s[{r}:{r+1}]"

def scan64(x, op="v_add_u32_dpp"):
    for sh in (1, 2, 4, 8):
        A("s_nop 1")
        A(f"{op} v{x}, v{x}, v{x} row_shr:{sh} row_mask:0xf bank_mask:0xf")
    A("s_nop 1")
    A(f"{op} v{x}, v{x}, v{x} row_bcast:15 row_mask:0xa bank_mask:0xf")
    A("s_nop 1")
    A(f"{op} v{x}, v{x}, v{x} row_bcast:31 row_mask:0xc bank_mask:0xf")

DBG = flag("dbg")
def stamp(idx):
    if DBG:
        A("s_memtime s[98:99]")
        A("s_waitcnt lgkmcnt(0)")
        A(f"s_mov_b32 s{86+idx}, s98")
def rstamp(idx):
    if DBG:
        A("s_memrealtime s[98:99]")
        A("s_waitcnt lgkmcnt(0)")
        A(f"s_mov_b32 s{86+idx}, s98")
def dbg_dump(nst, wave_sgpr, lab, wg=0, nw=4, slot0=0, wsh=0, kidx=0):
    if DBG:
        A(f"s_cmp_lg_u32 s{wave_sgpr}, 0")
        A(f"s_cbranch_scc1 {lab}W")
        srd(96, WS_, WS_+1, 1 << 20, (18 << 20) + kidx*65536)
        A("s_getreg_b32 s3, hwreg(HW_REG_XCC_ID)")
        A("s_mov_b64 exec, 1")
        A("v_mov_b32 v4, s3")
        A("s_getreg_b32 s3, hwreg(HW_REG_HW_ID)")
        A("v_mov_b32 v5, s3")
        A("s_lshl_b32 s3, s2, 4")
        A("v_mov_b32 v1, s3")
        A("v_mov_b32 v2, s94")
        A("v_mov_b32 v3, s95")
        A("buffer_store_dwordx4 v[2:5], v1, s[96:99], 0 offen")
        L(lab + "W")
        A(f"s_cmp_lg_u32 s2, {wg}")
        A(f"s_cbranch_scc1 {lab}")
        A(f"s_and_b32 s3, s{wave_sgpr}, {(1<<wsh)-1}")
        A(f"s_cmp_lg_u32 s3, {(1<<wsh)-1}")
        A(f"s_cbranch_scc1 {lab}")
        A(f"s_lshr_b32 s3, s{wave_sgpr}, {wsh}")
        A(f"s_cmp_ge_u32 s3, {nw}")
        A(f"s_cbranch_scc1 {lab}")
        A("s_load_dwordx2 s[98:99], s[0:1], 64")
        A("s_waitcnt lgkmcnt(0)")
        srd(100-4, 98, 99, 256)
        A("s_mov_b64 exec, 1")
        A(f"s_mul_i32 s3, s3, 64")
        A("v_mov_b32 v1, s3")
        for i in range(nst):
            A(f"v_mov_b32 v2, s{86+i}")
            A(f"buffer_store_dword v2, v1, s[96:99], 0 offen offset:{4*i+64*slot0}")
        L(lab)
X_, E_, SRC_, DST_, U_, V_, G_, OUT_, WS_ = 16, 18, 20, 22, 24, 26, 28, 30, 32

def tr_lane_addr(dst, lane, h, tmp):
    A(f"v_bfe_u32 v{dst}, v{lane}, 2, 2")
    A(f"v_lshl_add_u32 v{dst}, v{h}, 3, v{dst}")
    A(f"v_lshlrev_b32 v{dst}, 7, v{dst}")
    A(f"v_and_b32 v{tmp}, 1, v{lane}")
    A(f"v_lshl_add_u32 v{dst}, v{tmp}, 5, v{dst}")
    A(f"v_bfe_u32 v{tmp}, v{lane}, 4, 1")
    A(f"v_lshl_add_u32 v{dst}, v{tmp}, 4, v{dst}")
    A(f"v_bfe_u32 v{tmp}, v{lane}, 1, 1")
    A(f"v_lshl_add_u32 v{dst}, v{tmp}, 3, v{dst}")

K1_XT = 16384 + 10*4608
K1_LDS = K1_XT + 160*144
SC = " " + opt0("sc", "sc1").replace("+", " ").replace("none", "")
def k1():
    out.append(".globl k1_kernel")
    out.append(".p2align 8")
    out.append(".type k1_kernel,@function")
    L("k1_kernel")
    A(f"s_cmp_gt_u32 s2, {NCH+NG}")
    A("s_cbranch_scc1 K1_END")
    stamp(0)
    rstamp(8)
    A("s_load_dwordx16 s[16:31], s[0:1], 0")
    A("s_load_dwordx2 s[32:33], s[0:1], 72")
    A("v_lshrrev_b32 v1, 6, v0")
    A("v_lshlrev_b32 v3, 4, v0")
    A("v_readfirstlane_b32 s7, v1")
    A(f"s_cmp_eq_u32 s2, {NCH+NG}")
    A("s_cbranch_scc1 K1_FRAG")
    GF = flag("gemmfirst")
    if GF:
        A(f"s_cmp_lt_u32 s2, {NG}")
        A("s_cbranch_scc1 K1_GEMM")
        A(f"s_sub_u32 s34, s2, {NG}")
    else:
        A(f"s_cmp_ge_u32 s2, {NCH}")
        A("s_cbranch_scc1 K1_GEMM")
        A(f"s_mov_b32 s34, s2")
    HIST, BASE, STAGE = 0, 1024, 2048
    A("v_and_b32 v1, 0xff, v0")
    A("v_lshlrev_b32 v1, 2, v1")
    A("v_mov_b32 v2, 0")
    A("ds_write_b32 v1, v2")
    A("v_lshlrev_b32 v4, 3, v0")
    A(f"s_mul_i32 s3, s34, {CH*4}")
    A(f"s_add_u32 s4, s3, {CH*2}")
    A(f"s_mul_i32 s5, s34, {CH*2}")
    A(f"s_add_u32 s6, s5, {CH}")
    A(f"v_cmp_gt_u32 vcc, {CH//8}, v0")
    A("s_movk_i32 s10, -49")
    A("v_mov_b32 v5, 1")
    A("s_waitcnt lgkmcnt(0)")
    srd(36, DST_, DST_+1, E*4)
    A("s_mov_b64 s[8:9], vcc")
    A("s_mov_b64 exec, vcc")
    A("buffer_load_dwordx4 v[8:11], v3, s[36:39], s3 offen")
    A("buffer_load_dwordx4 v[12:15], v3, s[36:39], s4 offen")
    srd(40, SRC_, SRC_+1, E*4)
    A("buffer_load_dwordx4 v[16:19], v3, s[40:43], s3 offen")
    A("buffer_load_dwordx4 v[20:23], v3, s[40:43], s4 offen")
    srd(44, E_, E_+1, E*2)
    A("buffer_load_dwordx2 v[24:25], v4, s[44:47], s5 offen")
    A("buffer_load_dwordx2 v[26:27], v4, s[44:47], s6 offen")
    srd(48, WS_, WS_+1, NCH*CS, REC_OFF)
    srd(52, WS_, WS_+1, 256*1024, OFF_OFF)
    A("s_barrier")
    stamp(1)
    for half in range(2):
        A(f"s_waitcnt vmcnt({5-half})")
        if half == 0: stamp(2)
        for i in range(4*half, 4*half+4):
            A(f"v_mul_u32_u24 v{28+i}, 5350, v{8+i}")
            A(f"v_lshrrev_b32 v{60+i}, 18, v{28+i}")
            A(f"v_lshlrev_b32 v{28+i}, 2, v{60+i}")
            A(f"ds_add_rtn_u32 v{36+i}, v{28+i}, v5")
            A(f"v_lshlrev_b32 v{8+i}, 2, v{8+i}")
            A(f"v_mad_i32_i24 v{8+i}, v{28+i}, s10, v{8+i}")
    A("s_mov_b32 s11, 0xffff0000")
    A("s_movk_i32 s13, 21846")
    for i in range(8):
        A(f"s_waitcnt lgkmcnt({7-i})")
        A(f"v_mul_u32_u24 v{44+i}, s13, v{36+i}")
        A(f"v_lshrrev_b32 v{44+i}, 16, v{44+i}")
        A(f"v_mad_u32_u24 v{52+i}, v{44+i}, 13, v{36+i}")
        A(f"v_add_u32 v{44+i}, v{44+i}, v{36+i}")
    stamp(3)
    A("s_barrier")
    stamp(4)
    A("s_mov_b64 exec, -1")
    A("v_and_b32 v1, 63, v0")
    A("v_lshlrev_b32 v1, 4, v1")
    A(f"ds_read_b128 v[60:63], v1 offset:{HIST}")
    A("s_waitcnt lgkmcnt(0)")
    for i in range(4):
        A(f"v_add_u32 v{80+i}, 2, v{60+i}")
    for i in range(4):
        A(f"v_mul_u32_u24 v{80+i}, s13, v{80+i}")
    for i in range(4):
        A(f"v_lshrrev_b32 v{80+i}, 16, v{80+i}")
    A("v_add_u32 v65, v80, v81")
    A("v_add_u32 v66, v65, v82")
    A("v_add_u32 v67, v66, v83")
    A("v_mov_b32 v68, v67")
    scan64(68)
    A("s_nop 0")
    A("v_readlane_b32 s14, v68, 63")
    A("v_sub_u32 v68, v68, v67")
    A("v_add_u32 v69, v68, v80")
    A("v_add_u32 v70, v68, v65")
    A("v_add_u32 v71, v68, v66")
    A(f"v_mov_b32 v6, {STAGE}")
    for i in range(4):
        A(f"v_lshl_add_u32 v{72+i}, v{68+i}, 4, v6")
    A(f"ds_write_b128 v1, v[72:75] offset:{BASE}")
    A("s_waitcnt vmcnt(0)")
    A("s_cmp_lg_u32 s7, 9")
    A("s_cbranch_scc1 K1_NOOFF")
    for i in range(4):
        A(f"v_lshl_or_b32 v{76+i}, v{68+i}, 16, v{60+i}")
    A(f"s_lshl_b32 s12, s34, {OGL+2}")
    A(f"v_lshrrev_b32 v2, {OGL+2}, v1")
    A(f"v_and_b32 v80, {OG*4-1}, v1")
    A(f"v_lshl_or_b32 v2, v2, {OGL+10}, v80")
    A(f"buffer_store_dwordx4 v[76:79], v2, s[52:55], s12 offen{SC}")
    L("K1_NOOFF")
    A("s_add_u32 s14, s14, 7")
    A("s_and_b32 s14, s14, -8")
    A("s_lshl_b32 s14, s14, 4")
    A(f"s_sub_u32 s14, s14, {B1*32}")
    A("v_cmp_gt_u32 vcc, s14, v3")
    A("s_waitcnt lgkmcnt(0)")
    A("s_nop 0")
    A("v_cndmask_b32 v7, 0.5, v3, vcc")
    A("s_mov_b64 exec, s[8:9]")
    for i in range(8):
        A(f"ds_read_b32 v{60+i}, v{28+i} offset:{BASE}")
    for i in range(4):
        A(f"v_lshl_or_b32 v{16+2*i}, v{24+i}, 16, v{16+2*i}")
        A(f"v_and_or_b32 v{17+2*i}, v{24+i}, s11, v{17+2*i}")
    for i in range(8):
        A(f"s_waitcnt lgkmcnt({7+i})")
        A(f"v_lshl_add_u32 v{44+i}, v{44+i}, 2, v{60+i}")
        A(f"v_add_u32 v{52+i}, v{52+i}, v{60+i}")
        A(f"ds_write_b32 v{44+i}, v{16+i}")
        A(f"ds_write_b8 v{52+i}, v{8+i} offset:12")
    A(f"s_mul_i32 s12, s34, {CS}")
    A(f"s_add_u32 s13, s12, {B1*16}")
    A(f"s_add_u32 s14, s12, {B1*32}")
    A("s_mov_b64 exec, -1")
    A("s_waitcnt lgkmcnt(0)")
    A("s_barrier")
    stamp(5)
    for k in range(3):
        A(f"ds_read_b128 v[{8+4*k}:{11+4*k}], v3 offset:{STAGE+B1*16*k}")
    for k in range(3):
        A(f"s_waitcnt lgkmcnt({2-k})")
        A(f"buffer_store_dwordx4 v[{8+4*k}:{11+4*k}], v{7 if k == 2 else 3}, s[48:51], s{12+k} offen{SC}")
    if DBG: A("s_waitcnt vmcnt(0)")
    stamp(6)
    rstamp(9)
    dbg_dump(10, 7, "K1_DBGB", 117, 2, 0, 0)
    A("s_endpgm")
    L("K1_GEMM")
    if GF: A(f"s_mov_b32 s3, s2")
    else: A(f"s_sub_u32 s3, s2, {NCH}")
    A("s_cmp_ge_u32 s7, 5")
    A("s_cselect_b32 s6, 1, 0")
    A("s_mul_i32 s4, s6, 5")
    A("s_sub_u32 s4, s7, s4")
    A("v_and_b32 v1, 63, v0")
    A("v_and_b32 v2, 31, v1")
    A("v_lshrrev_b32 v4, 5, v1")
    A("s_mul_i32 s8, s3, 160")
    A("s_lshl_b32 s9, s4, 5")
    A("s_add_u32 s8, s8, s9")
    A("v_add_u32 v2, s9, v2")
    A("v_mul_u32_u24 v5, 144, v2")
    A("v_lshl_add_u32 v5, v4, 4, v5")
    A("v_lshrrev_b32 v107, 3, v0")
    A("v_mul_u32_u24 v107, 144, v107")
    A("v_and_b32 v7, 7, v0")
    A("v_lshl_add_u32 v107, v7, 4, v107")
    A(f"v_add_u32 v107, {K1_XT}, v107")
    A(f"s_mul_i32 s12, s3, {160*128}")
    A(f"s_add_u32 s13, s12, {80*128}")
    A("v_and_b32 v108, 0x1ff0, v3")
    A("s_waitcnt lgkmcnt(0)")
    srd(48, X_, X_+1, N*128)
    A("buffer_load_dwordx4 v[16:19], v3, s[48:51], s12 offen")
    A("buffer_load_dwordx4 v[20:23], v3, s[48:51], s13 offen")
    srd(36, G_, G_+1, 129*128)
    A("s_movk_i32 s10, 0x2000")
    A("buffer_load_dwordx4 v[8:11], v108, s[36:39], s10 offen")
    srd(40, V_, V_+1, 8192)
    A("buffer_load_dwordx4 v[12:15], v108, s[40:43], 0 offen")
    stamp(1)
    srd(52, WS_, WS_+1, N*256, T_OFF)
    tr_lane_addr(6, 1, 4, 7)
    A("s_lshl_b32 s11, s6, 6")
    A("v_add_u32 v6, s11, v6")
    A("s_mul_i32 s11, s7, 4608")
    A("s_add_u32 s11, s11, 16384")
    A("v_and_b32 v104, 31, v1")
    A("v_mul_u32_u24 v104, 144, v104")
    A("v_lshl_add_u32 v104, v4, 6, v104")
    A("v_add_u32 v104, s11, v104")
    A("v_lshrrev_b32 v105, 3, v1")
    A("v_and_b32 v106, 7, v1")
    A("v_lshlrev_b32 v106, 4, v106")
    A("v_add_u32 v2, s8, v105")
    A("v_mul_u32_u24 v105, 144, v105")
    A("v_add3_u32 v105, v105, v106, s11")
    A("v_lshl_add_u32 v2, v2, 8, v106")
    A("s_lshl_b32 s11, s6, 7")
    A("v_add_u32 v2, s11, v2")
    for k in range(2):
        A(f"s_waitcnt vmcnt({3-k})")
        if k == 0: stamp(2)
        A(f"ds_write_b128 v107, v[{16+4*k}:{19+4*k}] offset:{80*144*k}")
    for k in range(2):
        A(f"s_waitcnt vmcnt({1-k})")
        A(f"ds_write_b128 v108, v[{8+4*k}:{11+4*k}] offset:{8192*k}")
    A("s_waitcnt lgkmcnt(0)")
    stamp(3)
    A("s_barrier")
    stamp(4)
    AX, AH, DX, DH = 40, 56, 72, 88
    for sidx in range(4):
        A(f"ds_read_b128 v[{24+4*sidx}:{27+4*sidx}], v5 offset:{K1_XT+32*sidx}")
    for sidx in range(4):
        for u in range(2):
            A(f"ds_read_b64_tr_b16 v[{AX+4*sidx+2*u}:{AX+4*sidx+2*u+1}], v6 offset:{sidx*2048+u*512}")
        for u in range(2):
            A(f"ds_read_b64_tr_b16 v[{AH+4*sidx+2*u}:{AH+4*sidx+2*u+1}], v6 offset:{8192+sidx*2048+u*512}")
    for sidx in range(4):
        A(f"s_waitcnt lgkmcnt({14-4*sidx})")
        cx = "0" if sidx == 0 else v(DX, 16)
        A(f"v_mfma_f32_32x32x16_bf16 {v(DX,16)}, {v(AX+4*sidx,4)}, {v(24+4*sidx,4)}, {cx}")
        A(f"s_waitcnt lgkmcnt({12-4*sidx})")
        ch = "0" if sidx == 0 else v(DH, 16)
        A(f"v_mfma_f32_32x32x16_bf16 {v(DH,16)}, {v(AH+4*sidx,4)}, {v(24+4*sidx,4)}, {ch}")
    A(f"s_mov_b32 s40, 0x{NEGL:x}")
    A("s_mov_b32 s41, 0x00800000")
    A("s_mov_b32 s42, 0x7fff0000")
    A("s_mov_b32 s43, 0x80000000")
    A("s_nop 7")
    A("s_nop 3")
    for i in range(16):
        A(f"v_fma_f32 v{DX+i}, s40, v{DX+i}, {KLOG}")
    for i in range(16):
        A(f"v_exp_f32 v{DX+i}, v{DX+i}")
    def comp(dst, B, lo, t1, t2):
        A(f"v_max_f32 v{t1}, abs(v{B}), s41")
        A(f"v_and_or_b32 v{t2}, v{B}, s43, v{lo}")
        A(f"v_sub_u32 v{t1}, v{t1}, v{lo}")
        A(f"v_add_u32 v{t1}, 0x8000, v{t1}")
        A(f"v_bfi_b32 v{dst}, s42, v{t1}, v{t2}")
    for grp in range(2):
        ps = [4*grp + j for j in range(4)]
        T1 = [8, 9, 10, 11]; T2 = [12, 13, 14, 15]; LO = [16, 17, 18, 19]
        for j, p in enumerate(ps):
            A(f"v_cvt_pk_bf16_f32 v{LO[j]}, v{DH+2*p}, 0")
        for j, p in enumerate(ps):
            comp(DX+2*p, DX+2*p, LO[j], T1[j], T2[j])
        for j, p in enumerate(ps):
            A(f"v_lshrrev_b32 v{LO[j]}, 16, v{DX+2*p}")
        for j, p in enumerate(ps):
            comp(DH+2*p+1, DH+2*p+1, LO[j], T1[j], T2[j])
        for j, p in enumerate(ps):
            A(f"v_lshrrev_b32 v{LO[j]}, 16, v{DH+2*p+1}")
        for j, p in enumerate(ps):
            comp(DX+2*p+1, DX+2*p+1, LO[j], T1[j], T2[j])
        for k in range(2):
            kk = 2*grp + k
            A(f"ds_write_b128 v104, v[{DX+4*kk}:{DX+4*kk+3}] offset:{16*kk}")
    A("s_waitcnt lgkmcnt(0)")
    for i in range(4):
        A(f"ds_read_b128 v[{8+4*i}:{11+4*i}], v105 offset:{8*144*i}")
    for i in range(4):
        A(f"s_waitcnt lgkmcnt({3-i})")
        A(f"buffer_store_dwordx4 v[{8+4*i}:{11+4*i}], v2, s[52:55], 0 offen offset:{2048*i if i < 2 else 2048*(i-2)}{SC}")
        if i == 1: A("v_add_u32 v2, 4096, v2")
    stamp(5)
    if DBG: A("s_waitcnt vmcnt(0)")
    stamp(6)
    rstamp(9)
    dbg_dump(10, 7, "K1_DBGG", 50 if GF else 200, 2, 2, 0)
    A("s_endpgm")
    L("K1_FRAG")
    A("s_cmp_ge_u32 s7, 8")
    A("s_cbranch_scc1 K1_END")
    A("v_and_b32 v1, 63, v0")
    A("v_lshrrev_b32 v4, 5, v1")
    A("v_and_b32 v5, 15, v1")
    A("v_lshrrev_b32 v6, 4, v1")
    A("v_lshlrev_b32 v6, 1, v6")
    A("v_lshl_add_u32 v5, v5, 3, v6")
    A("s_waitcnt lgkmcnt(0)")
    srd(36, G_, G_+1, 129*128)
    A("buffer_load_dwordx4 v[8:11], v3, s[36:39], 0 offen")
    srd(40, U_, U_+1, 8192)
    A("buffer_load_dwordx4 v[12:15], v3, s[40:43], 0 offen")
    A("s_movk_i32 s4, 0x4000")
    A("buffer_load_ushort v20, v5, s[36:39], s4 offen")
    srd(52, WS_, WS_+1, FR_SIZE, FR_OFF)
    tr_lane_addr(6, 1, 4, 7)
    A("s_lshr_b32 s4, s7, 1")
    A("s_and_b32 s5, s7, 1")
    A("s_lshl_b32 s4, s4, 13")
    A("s_lshl_b32 s5, s5, 6")
    A("s_add_u32 s4, s4, s5")
    A("v_add_u32 v6, s4, v6")
    A("v_lshlrev_b32 v2, 4, v1")
    for k in range(2):
        A(f"s_waitcnt vmcnt({2-k})")
        A(f"ds_write_b128 v3, v[{8+4*k}:{11+4*k}] offset:{8192*k}")
    A("s_waitcnt lgkmcnt(0)")
    A("s_barrier")
    A("s_cmp_eq_u32 s7, 4")
    A("s_cbranch_scc1 K1_COEF")
    A("s_cmp_gt_u32 s7, 4")
    A("s_cbranch_scc1 K1_END")
    for sidx in range(4):
        for u in range(2):
            A(f"ds_read_b64_tr_b16 v[{40+4*sidx+2*u}:{40+4*sidx+2*u+1}], v6 offset:{sidx*2048+u*512}")
    A("s_lshl_b32 s4, s7, 12")
    for sidx in range(4):
        A(f"s_waitcnt lgkmcnt({6-2*sidx})")
        A(f"buffer_store_dwordx4 v[{40+4*sidx}:{43+4*sidx}], v2, s[52:55], s4 offen offset:{1024*sidx}{SC}")
    A("s_endpgm")
    L("K1_COEF")
    A("s_waitcnt vmcnt(0)")
    A("v_lshlrev_b32 v20, 16, v20")
    A("v_and_b32 v60, 0x7fffffff, v20")
    scan64(60, "v_max_u32_dpp")
    A("s_nop 1")
    A("v_readlane_b32 s5, v60, 63")
    A("s_lshr_b32 s4, s5, 23")
    A("s_max_u32 s4, s4, 1")
    A("s_lshl_b32 s8, s4, 23")
    A("s_cmp_gt_u32 s4, 253")
    A("s_cselect_b32 s8, 0x7fc00000, s8")
    A("s_min_u32 s4, s4, 253")
    A("s_sub_u32 s4, 254, s4")
    A("s_lshl_b32 s4, s4, 23")
    A("s_or_b32 s4, s4, 0x80000000")
    A("v_mov_b32 v70, s5")
    A("v_mul_f32 v60, s4, v20")
    A("v_mul_f32 v70, s4, v70")
    A("v_mul_f32 v70, v70, v70")
    A("v_max_f32 v70, 1.0, v70")
    A("v_rcp_f32 v71, v70")
    A("v_mov_b32 v70, s8")
    for k in range(1, 8):
        A(f"v_mul_f32 v{60+k}, v{60+k-1}, v60")
    for k in range(1, 8):
        A(f"v_mul_f32 v{60+k}, 0x{f32bits(POLY[k]):x}, v{60+k}")
    for k in range(8):
        A(f"v_cvt_f16_f32 v{60+k}, v{60+k}")
    for k in range(4):
        A(f"v_pack_b32_f16 v{40+k}, v{60+2*k}, v{61+2*k}")
    A(f"s_movk_i32 s4, {FR_B}")
    A(f"buffer_store_dwordx4 v[40:43], v2, s[52:55], s4 offen{SC}")
    A("v_lshlrev_b32 v2, 3, v1")
    A(f"buffer_store_dwordx2 v[70:71], v2, s[52:55], s4 offen offset:{FR_S-FR_B}{SC}")
    L("K1_END")
    A("s_endpgm")


RS_ = 272
AGG, IA, XAL = 0, 52*RS_, 104*RS_
CNT = 156*RS_; SPN = CNT + 512; ZR = CNT + 1024
SI = CNT + 2048
CAP = 4096
PW = SI + (CAP + 256)*4
XT = PW
SLOT = PW + CAP*16 + 2560
SS = 516
SP = SLOT + 26112
K2_LDS = SP + 4096
assert PW % 16 == 0 and PW < 65536 and SLOT % 16 == 0 and K2_LDS <= 163840 and BN*SS + 8 <= 25600
DUMMY = 0x7b00

def k2():
    out.append(".globl k2_kernel")
    out.append(".p2align 8")
    out.append(".type k2_kernel,@function")
    L("k2_kernel")
    A(f"s_cmp_ge_u32 s2, {NB}")
    A("s_cbranch_scc1 K2_END")
    stamp(0)
    rstamp(8)
    if DBG: A("s_mov_b32 s93, 0")
    A("s_load_dwordx16 s[16:31], s[0:1], 0")
    A("s_load_dwordx2 s[32:33], s[0:1], 72")
    A("s_and_b32 s3, s2, 7")
    A("s_lshr_b32 s2, s2, 3")
    A("s_lshl_b32 s3, s3, 5")
    A("s_or_b32 s2, s2, s3")
    S_WAVE = 7
    SRD_T, SRD_REC, SRD_A, SRD_G, SRD_X = 36, 40, 44, 48, 52
    S_W, S_OFFB, S_MODE, S_ESC = 56, 57, 58, 59
    S_M = 60
    S_NE, S_NE2 = 60, 62
    S_QR, S_DEL, S_NN, S_NST = 64, 65, 66, 67
    S_Q, S_Q1, S_RUN, S_QB, S_REM, S_END, S_BIG, S_CNODE = 74, 75, 76, 77, 78, 79, 80, 81
    S_RET = 82
    S_I, S_NODE = 84, 85
    S_THR, S_RET2 = 6, 34
    V_LANE, V_LOFF, V_PADDR, V_FOUR, V_RADDR, V_SUB3, V_CB, V_W, V_OFF = 1, 2, 3, 4, 5, 6, 7, 8, 9
    V_B = 10
    V_SC = 14
    V_END, V_BQ, V_DEL = 18, 19, 20
    V_R = 24
    V_LA = 36
    V_A = 48
    V_XD = 52
    GA, GD, V_X = 64, 80, 96
    A("v_lshrrev_b32 v22, 6, v0")
    A(f"v_and_b32 v{V_LANE}, 63, v0")
    A(f"v_readfirstlane_b32 s{S_WAVE}, v22")
    A(f"v_mul_u32_u24 v{V_W}, 10923, v0")
    A(f"v_lshrrev_b32 v{V_W}, 16, v{V_W}")
    A(f"v_lshlrev_b32 v19, {OGL+2}, v{V_W}")
    A(f"v_cmp_gt_u32 vcc, {NCH}, v{V_W}")
    A(f"s_lshr_b32 s3, s2, {OGL}")
    A(f"s_lshl_b32 s3, s3, {OGL+10}")
    A(f"s_and_b32 s4, s2, {OG-1}")
    A(f"s_lshl2_add_u32 s{S_OFFB}, s4, s3")
    A(f"v_cndmask_b32 v19, 0.5, v19, vcc")
    A("v_and_b32 v22, 15, v0")
    A(f"v_lshlrev_b32 v{V_LOFF}, 4, v22")
    A(f"v_lshlrev_b32 v22, 4, v{V_LANE}")
    A(f"v_lshlrev_b32 v21, 3, v{V_LANE}")
    A(f"s_lshr_b32 s9, s{S_WAVE}, 1")
    A("s_lshl_b32 s5, s9, 12")
    A(f"s_movk_i32 s4, {FR_B}")
    A(f"s_mul_i32 s8, s2, {BN*128}")
    A(f"s_lshl_b32 s9, s{S_WAVE}, 10")
    A("s_add_u32 s8, s8, s9")
    A("s_sub_u32 s8, s8, 8192")
    A(f"v_mul_u32_u24 v{V_CB}, {SS}, v{V_LANE}")
    A(f"v_add_u32 v{V_CB}, {SLOT}, v{V_CB}")
    A("v_cmp_gt_u32 vcc, 64, v0")
    A("v_and_b32 v23, 511, v0")
    A("v_lshlrev_b32 v23, 2, v23")
    A(f"v_cndmask_b32 v48, 0, v{V_CB}, vcc")
    A("v_cmp_gt_u32 vcc, 512, v0")
    for i in range(4):
        A(f"v_mov_b32 v{56+i}, 0x{DUMMY:x}")
    A("v_lshlrev_b32 v49, 4, v0")
    A(f"v_add_u32 v49, {SLOT}, v49")
    A("s_mov_b64 exec, vcc")
    A(f"ds_write_b32 v23, v48 offset:{CNT}")
    A("s_mov_b64 exec, -1")
    A("v_cmp_gt_u32 vcc, 576, v0")
    A("ds_write_b128 v49, v[56:59]")
    A("s_mov_b64 exec, vcc")
    A("ds_write_b128 v49, v[56:59] offset:16384")
    A("s_mov_b64 exec, -1")
    A("s_waitcnt lgkmcnt(0)")
    srd(SRD_A, WS_, WS_+1, 256*1024, OFF_OFF)
    A(f"buffer_load_dword v{V_OFF}, v19, {s4(SRD_A)}, s{S_OFFB} offen")
    srd(12, WS_, WS_+1, FR_SIZE, FR_OFF)
    srd(SRD_X, X_, X_+1, N*128)
    A(f"s_cmp_ge_u32 s{S_WAVE}, 8")
    A("s_cbranch_scc1 K2_LX")
    for sidx in range(4):
        A(f"buffer_load_dwordx4 {v(GA+4*sidx,4)}, v22, s[12:15], s5 offen offset:{1024*sidx}")
    A("s_branch K2_LJ")
    L("K2_LX")
    A(f"buffer_load_dwordx4 {v(V_XD,4)}, v22, {s4(SRD_X)}, s8 offen")
    L("K2_LJ")
    A(f"buffer_load_dwordx4 {v(V_B,4)}, v22, s[12:15], s4 offen")
    A(f"buffer_load_dwordx2 {v(V_SC,2)}, v21, s[12:15], s4 offen offset:{FR_S-FR_B}")
    srd(SRD_G, G_, G_+1, 129*128)
    srd(SRD_T, WS_, WS_+1, N, T_OFF)
    A(f"s_or_b32 s{SRD_T+1}, s{SRD_T+1}, 0x1000000")
    srd(SRD_REC, WS_, WS_+1, NCH*CS, REC_OFF)
    A(f"s_mov_b32 s{S_MODE}, 0")
    A(f"v_lshrrev_b32 v{V_PADDR}, 4, v0")
    A(f"v_mul_u32_u24 v{V_PADDR}, {RS_}, v{V_PADDR}")
    A(f"v_add_u32 v{V_PADDR}, v{V_PADDR}, v{V_LOFF}")
    A(f"v_mul_u32_u24 v23, 6, v{V_W}")
    A(f"v_sub_u32 v23, v0, v23")
    A(f"v_mul_u32_u24 v{V_SUB3}, 3, v23")
    A(f"v_mul_u32_u24 v22, {CS//16}, v{V_W}")
    A(f"v_add_u32 v22, v22, v23")
    A(f"v_mov_b32 v{V_FOUR}, 4")
    A(f"v_mov_b32 v51, 0.5")
    A(f"s_cmp_ge_u32 s{S_WAVE}, 8")
    A("s_cbranch_scc1 K2_W2")
    A("s_waitcnt vmcnt(6)")
    A("s_branch K2_W3")
    L("K2_W2")
    A("s_waitcnt vmcnt(3)")
    L("K2_W3")
    stamp(1)
    A(f"v_and_b32 v23, 0xffff, v{V_OFF}")
    A(f"v_lshrrev_b32 v{V_RADDR}, 16, v{V_OFF}")
    A(f"v_sub_u32 v23, v23, v{V_SUB3} clamp")
    A(f"v_add_lshl_u32 v{V_RADDR}, v{V_RADDR}, v22, 4")
    for r in range(3):
        A(f"v_cmp_lt_u32 {s2(S_M+6*r)}, {18*r}, v23")
    for r in range(3):
        A(f"v_cndmask_b32 v{V_A+r}, v51, v{V_RADDR}, {s2(S_M+6*r)}")
        A(f"buffer_load_dwordx4 {v(V_R+4*r,4)}, v{V_A+r}, {s4(SRD_REC)}, 0 offen offset:{96*r}")
    for r in range(3):
        for j in (1, 2):
            A(f"v_cmp_lt_u32 {s2(S_M+6*r+2*j)}, {18*r+j}, v23")
    A(f"s_cmp_lt_u32 s{S_WAVE}, 8")
    A("s_cbranch_scc1 K2_GEMM")
    A(f"v_lshrrev_b32 v56, 3, v0")
    A(f"v_mul_u32_u24 v56, 144, v56")
    A(f"v_and_b32 v57, 7, v0")
    A(f"v_lshl_add_u32 v56, v57, 4, v56")
    A("s_waitcnt vmcnt(5)")
    A(f"ds_write_b128 v56, {v(V_XD,4)} offset:{XT-64*144}")
    A("s_waitcnt lgkmcnt(0)")
    A("s_barrier")
    A("s_branch K2_RANK")
    L("K2_GEMM")
    A(f"s_and_b32 s8, s{S_WAVE}, 1")
    A("s_lshl_b32 s8, s8, 5")
    A(f"v_and_b32 v56, 31, v{V_LANE}")
    A(f"v_lshrrev_b32 v57, 5, v{V_LANE}")
    A(f"v_add_u32 v56, s8, v56")
    A(f"v_mul_u32_u24 v58, 144, v56")
    A(f"v_lshl_add_u32 v58, v57, 4, v58")
    A(f"s_lshr_b32 s4, s{S_WAVE}, 2")
    A(f"s_bfe_u32 s5, s{S_WAVE}, 0x10001")
    A(f"v_mul_u32_u24 v59, {RS_}, v56")
    A("v_lshl_add_u32 v59, v57, 6, v59")
    A("s_lshl_b32 s9, s5, 7")
    A("v_add_u32 v59, s9, v59")
    A(f"v_cmp_gt_u32 s[10:11], {BN}, v56")
    A("s_barrier")
    for sidx in range(4):
        A(f"ds_read_b128 {v(V_X+4*sidx,4)}, v58 offset:{XT+32*sidx}")
    A("s_waitcnt vmcnt(5)")
    for sidx in range(4):
        A(f"s_waitcnt lgkmcnt({3-sidx})")
        c = "0" if sidx == 0 else v(GD, 16)
        A(f"v_mfma_f32_32x32x16_bf16 {v(GD,16)}, {v(GA+4*sidx,4)}, {v(V_X+4*sidx,4)}, {c}")
    A(f"s_mov_b32 s8, 0x{NEGL:x}")
    A(f"s_mov_b32 s9, 0x{f32bits(3.3):x}")
    A("s_nop 7")
    A("s_nop 3")
    A("s_cmp_lg_u32 s4, 0")
    A("s_mov_b64 exec, s[10:11]")
    A("s_cbranch_scc1 K2_GU")
    for i in range(16):
        A(f"v_mul_f32 v{GD+i}, s8, v{GD+i}")
    for kk in range(4):
        A(f"ds_write_b128 v59, {v(GD+4*kk,4)} offset:{XAL+16*kk}")
    for i in range(16):
        A(f"v_sub_f32 v{GA+i}, {KLOG}, v{GD+i}")
    A(f"v_max_f32 v60, v{GD}, v{GD+1}")
    for i in range(7):
        A(f"v_max3_f32 v60, v60, v{GD+2+2*i}, v{GD+3+2*i}")
    A("v_cmp_ge_f32 vcc, s9, v60")
    for i in range(16):
        A(f"v_exp_f32 v{GA+i}, v{GA+i}")
    A(f"v_cndmask_b32 v{GA}, -1, v{GA}, vcc")
    for kk in range(4):
        A(f"ds_write_b128 v59, {v(GA+4*kk,4)} offset:{IA+16*kk}")
    A("s_branch K2_GJ")
    L("K2_GU")
    for kk in range(4):
        A(f"ds_write_b128 v59, {v(GD+4*kk,4)} offset:{AGG+16*kk}")
    L("K2_GJ")
    A("s_mov_b64 exec, -1")
    L("K2_RANK")
    def nodebyte(dst, src, j):
        if j == 0: A(f"v_and_b32 v{dst}, 0xff, v{src}")
        else: A(f"v_bfe_u32 v{dst}, v{src}, {8*j}, 8")
    A(f"s_mov_b32 s8, {SLOT+25592}")
    for r in range(2):
        A(f"s_waitcnt vmcnt({2-r})")
        for j in range(3):
            nodebyte(V_LA+3*r+j, V_R+4*r+3, j)
        for j in range(3):
            A(f"s_mov_b64 exec, {s2(S_M+6*r+2*j)}")
            A(f"ds_add_rtn_u32 v{V_LA+3*r+j}, v{V_LA+3*r+j}, v{V_FOUR} offset:{CNT}")
        A("s_mov_b64 exec, -1")
    for k in range(6):
        r, j = divmod(k, 3)
        A("s_waitcnt lgkmcnt(5)")
        A(f"s_mov_b64 exec, {s2(S_M+6*r+2*j)}")
        A(f"v_min_u32 v{V_LA+k}, s8, v{V_LA+k}")
        A(f"ds_write_b32 v{V_LA+k}, v{V_R+4*r+j}")
    A("s_mov_b64 exec, -1")
    A("s_waitcnt vmcnt(0)")
    A(f"v_readfirstlane_b32 s{S_ESC}, v{V_SC}")
    A(f"v_readfirstlane_b32 s{S_THR}, v{V_SC+1}")
    A(f"s_cmp_eq_u64 {s2(S_M+12)}, 0")
    A("s_cbranch_scc1 K2_NOR3")
    for j in range(3):
        nodebyte(V_LA+6+j, V_R+11, j)
    for j in range(3):
        A(f"s_mov_b64 exec, {s2(S_M+12+2*j)}")
        A(f"ds_add_rtn_u32 v{V_LA+6+j}, v{V_LA+6+j}, v{V_FOUR} offset:{CNT}")
    A("s_waitcnt lgkmcnt(0)")
    for j in range(3):
        A(f"s_mov_b64 exec, {s2(S_M+12+2*j)}")
        A(f"v_min_u32 v{V_LA+6+j}, s8, v{V_LA+6+j}")
        A(f"ds_write_b32 v{V_LA+6+j}, v{V_R+8+j}")
    A("s_mov_b64 exec, -1")
    A("v_cmpx_lt_u32 vcc, 54, v23")
    A("v_mov_b32 v56, 0")
    A("v_mov_b32 v57, 0x100000")
    A(f"ds_write_b32 v56, v57 offset:{CNT+252}")
    A("s_mov_b64 exec, -1")
    L("K2_NOR3")
    A(f"v_lshlrev_b32 v52, 2, v{V_LANE}")
    A("s_waitcnt lgkmcnt(0)")
    stamp(2)
    A("s_barrier")
    stamp(3)
    A(f"ds_read_b32 v53, v52 offset:{CNT}")
    A("s_waitcnt lgkmcnt(0)")
    A(f"v_sub_u32 v53, v53, v{V_CB}")
    A("v_add_u32 v56, 12, v53")
    A("v_lshrrev_b32 v56, 4, v56")
    A(f"v_mov_b32 v{V_END}, v56")
    scan64(V_END)
    A("v_cmp_lt_u32 vcc, 32, v56")
    A(f"v_cmp_ne_u32 {s2(S_NE)}, 0, v56")
    A(f"v_readlane_b32 s12, v{V_END}, 63")
    A(f"v_sub_u32 v{V_BQ}, v{V_END}, v56")
    A(f"v_lshlrev_b32 v57, 4, v{V_BQ}")
    A(f"v_sub_u32 v{V_DEL}, v{V_CB}, v57")
    A("s_cbranch_vccnz K2_GENERAL")
    A(f"s_cmp_gt_u32 s12, {CAP//4}")
    A("s_cbranch_scc1 K2_GENERAL")
    L("K2_SETUP")
    IX = 24
    AR = 32
    PR = 48
    DS = 56
    VIA, VIAN, VN, VD, VACC, VS, VH, VU, VT = 72, 76, 80, 84, 88, 92, 96, 100, 104
    VRA, VRI, VINC, VDST, VG4, VNX, VREC, VP4, VLQ, VDL = 108, 109, 110, 111, 112, 113, 114, 115, 116, 117
    SL = 118
    VPREV, VPN = 124, 125
    S_PAR = 9
    A(f"s_mul_i32 s13, s12, s{S_WAVE}")
    A(f"s_add_u32 s14, s13, s12")
    A(f"s_lshr_b32 s{S_Q}, s13, 4")
    A(f"s_lshr_b32 s{S_Q1}, s14, 4")
    A(f"v_cmp_lt_u32 vcc, s{S_Q}, v{V_END}")
    A(f"s_mov_b32 s4, 0x7fffffff")
    A(f"v_writelane_b32 v{V_BQ}, s4, 63")
    A(f"s_lshl_b32 s15, s{S_WAVE}, 2")
    A(f"v_mov_b32 v{VU}, s15")
    A(f"v_mov_b32 v{VU+1}, 0xffff")
    A(f"ds_write_b32 v{VU}, v{VU+1} offset:{SPN}")
    A(f"s_cmp_eq_u32 s{S_Q}, s{S_Q1}")
    A("s_cbranch_scc1 K2_MAINDONE")
    A(f"s_and_b64 {s2(S_NE)}, {s2(S_NE)}, vcc")
    A(f"s_ff1_i32_b64 s{S_CNODE}, {s2(S_NE)}")
    A(f"s_bitset0_b64 {s2(S_NE)}, s{S_CNODE}")
    A(f"s_mov_b64 {s2(S_NE2)}, {s2(S_NE)}")
    A(f"s_bitset1_b64 {s2(S_NE2)}, 63")
    A(f"s_ff1_i32_b64 s{S_NN}, {s2(S_NE2)}")
    A(f"v_readlane_b32 s{S_DEL}, v{V_DEL}, s{S_CNODE}")
    A(f"v_readlane_b32 s{S_NST}, v{V_BQ}, s{S_NN}")
    A(f"v_lshrrev_b32 v{VLQ}, 2, v{V_LANE}")
    A(f"s_lshl_b32 s4, s{S_Q}, 4")
    A(f"v_lshl_add_u32 v{VP4}, v{V_LANE}, 2, s4")
    A(f"s_mov_b32 s{S_QR}, s{S_Q}")
    mapn = [0]
    def mapread():
        t = mapn[0]; mapn[0] += 1
        A(f"v_add_u32 v{VDL}, s{S_DEL}, v{VP4}")
        A(f"s_sub_u32 s4, s{S_NST}, s{S_QR}")
        A("s_cmp_ge_u32 s4, 16")
        A(f"s_cbranch_scc1 K2_MD{t}")
        L(f"K2_ML{t}")
        A(f"v_readlane_b32 s{S_DEL}, v{V_DEL}, s{S_NN}")
        A(f"s_bitset0_b64 {s2(S_NE2)}, s{S_NN}")
        A(f"s_ff1_i32_b64 s{S_NN}, {s2(S_NE2)}")
        A(f"v_readlane_b32 s{S_NST}, v{V_BQ}, s{S_NN}")
        A(f"v_cmpx_le_u32 vcc, s4, v{VLQ}")
        A(f"v_add_u32 v{VDL}, s{S_DEL}, v{VP4}")
        A("s_mov_b64 exec, -1")
        A(f"s_sub_u32 s4, s{S_NST}, s{S_QR}")
        A("s_cmp_lt_u32 s4, 16")
        A(f"s_cbranch_scc1 K2_ML{t}")
        L(f"K2_MD{t}")
        A(f"ds_read_b32 v{VREC}, v{VDL}")
        A(f"s_add_u32 s{S_QR}, s{S_QR}, 16")
    def powers():
        A(f"ds_write_b32 v{VP4}, v{VREC} offset:{SI}")
        A(f"v_and_b32 v{VT+1}, 0xffff0000, v{VREC}")
        A(f"v_mul_f32 v{VT+1}, s{S_ESC}, v{VT+1}")
        A(f"v_mul_f32 v{VT+2}, v{VT+1}, v{VT+1}")
        A(f"v_cmp_ge_f32 vcc, s{S_THR}, v{VT+2}")
        A(f"v_cvt_pkrtz_f16_f32 v{VT}, v{VT+1}, v{VT+2}")
        A(f"v_lshlrev_b32 v{VDL}, 2, v{VP4}")
        A(f"v_add_u32 v{VP4}, 0x100, v{VP4}")
        A(f"v_cndmask_b32 v{VT}, -1, v{VT}, vcc")
        for j in range(3):
            A(f"v_pk_mul_f16 v{VT+j+1}, v{VT+j}, v{VT} op_sel:[0,1] op_sel_hi:[1,1]")
        A(f"ds_write_b128 v{VDL}, {v(VT,4)} offset:{PW}")
    mapread()
    A(f"v_lshrrev_b32 v{VG4}, 4, v{V_LANE}")
    A(f"v_and_b32 v{VT}, 3, v{V_LANE}")
    A(f"v_cmp_eq_u32 vcc, v{VT}, v{VG4}")
    A(f"v_mov_b32 v{VT+1}, 512")
    A(f"v_bfe_u32 v{VT}, v{V_LANE}, 2, 2")
    A(f"v_cndmask_b32 v{VINC}, 0, v{VT+1}, vcc")
    A(f"s_lshl_b32 s4, s{S_Q}, 6")
    A(f"s_add_u32 s4, s4, {PW}")
    A(f"v_lshl_add_u32 v{VT}, v{VT}, 4, s4")
    A(f"v_mov_b32 v{VT+1}, {ZR}")
    A(f"v_cndmask_b32 v{VRA}, v{VT+1}, v{VT}, vcc")
    A(f"v_lshlrev_b32 v{VG4}, 2, v{VG4}")
    A(f"s_lshl_b32 s4, s{S_Q}, 4")
    A(f"s_add_u32 s4, s4, {SI}")
    A(f"v_add_u32 v{VRI}, s4, v{VG4}")
    for k in range(4):
        A(f"v_mov_b32 v{IX+2*k+1}, v{V_LOFF}")
    A(f"s_mov_b32 s{S_PAR}, 0")
    A(f"v_readlane_b32 s{S_END}, v{V_END}, s{S_CNODE}")
    A(f"v_readlane_b32 s5, v{V_BQ}, s{S_CNODE}")
    A(f"s_mul_i32 s4, s{S_CNODE}, {RS_}")
    A(f"v_add_u32 v{VNX}, s4, v{V_LOFF}")
    A(f"v_add_u32 v{VDST}, v{VNX}, v{VG4}")
    A(f"v_mov_b32 v{VPN}, v{VDST}")
    A(f"s_cmp_lt_u32 s5, s{S_Q}")
    A("s_cbranch_scc0 K2_NOSHARE")
    A(f"s_lshl_b32 s4, s{S_WAVE}, 8")
    A(f"s_add_u32 s4, s4, {SP}")
    A(f"v_add3_u32 v{VDST}, v{V_LOFF}, v{VG4}, s4")
    A(f"v_mov_b32 v{VU+1}, s{S_CNODE}")
    A(f"v_mov_b32 v{VPN}, {ZR}")
    A(f"ds_write_b32 v{VU}, v{VU+1} offset:{SPN}")
    L("K2_NOSHARE")
    A(f"ds_read_b32 v{VPREV}, v{VPN}")
    A(f"ds_read_b128 {v(VIA,4)}, v{VNX} offset:{IA}")
    A(f"s_min_u32 s{S_REM}, s{S_END}, s{S_Q1}")
    A(f"s_sub_u32 s{S_REM}, s{S_REM}, s{S_Q}")
    A(f"s_mov_b32 s{S_RUN}, s{S_Q}")
    A(f"s_mov_b32 s{S_BIG}, 0x{f32bits(2.0**118):x}")
    A("s_waitcnt lgkmcnt(2)")
    A(f"ds_write_b32 v{VP4}, v{VREC} offset:{SI}")
    for k in range(4):
        A(f"ds_read_u16 v{IX+2*k}, v{VRI} offset:{16*k}")
    n0 = len(out)
    powers()
    del out[n0]
    tail = out[n0:]; del out[n0:]
    out.extend(tail[:5])
    for k in range(3):
        A(f"s_waitcnt lgkmcnt({3-k})")
        A(f"buffer_load_dwordx4 {v(DS+4*k,4)}, {v(IX+2*k,2)}, {s4(SRD_T)}, 0 idxen offen")
    out.extend(tail[5:])
    for k in range(3):
        A(f"ds_read_b128 {v(AR+4*k,4)}, v{VRA} offset:{64*k}")
    for k in range(4, 6):
        A(f"ds_read_u16 v{IX+2*(k%4)}, v{VRI} offset:{16*k}")
    mapread()
    for i in range(4):
        A(f"v_mov_b32 v{VN+i}, 0")
        A(f"v_mov_b32 v{VD+i}, 1.0")
        A(f"v_mov_b32 v{VACC+i}, 0")
    A("s_waitcnt lgkmcnt(5)")
    A(f"v_mfma_f32_16x16x32_f16 {v(PR,4)}, {v(AR,4)}, {v(V_B,4)}, 1.0")
    A("s_waitcnt lgkmcnt(0)")
    stamp(4)
    PRIO = not flag("noprio")
    if PRIO: A("s_setprio 3")
    L("K2_LOOP")
    for k in range(8):
        d3 = DS + 4*((k+3) % 4); d0 = DS + 4*(k % 4)
        pc = PR + 4*(k % 2); pn = PR + 4*((k+1) % 2)
        A(f"ds_read_u16 v{IX+2*((k+2)%4)}, v{VRI} offset:{16*(k+6)}")
        A(f"ds_read_b128 {v(AR+4*((k+3)%4),4)}, v{VRA} offset:{64*(k+3)}")
        A("s_waitcnt lgkmcnt(4)")
        A(f"buffer_load_dwordx4 {v(d3,4)}, {v(IX+2*((k+3)%4),2)}, {s4(SRD_T)}, 0 idxen offen")
        A(f"v_mfma_f32_16x16x32_f16 {v(pn,4)}, {v(AR+4*((k+1)%4),4)}, {v(V_B,4)}, 1.0")
        A("s_waitcnt vmcnt(3)")
        A(f"v_lshlrev_b64 {v(VH,2)}, 16, {v(d0,2)}")
        A(f"v_lshlrev_b64 {v(VH+2,2)}, 16, {v(d0+2,2)}")
        for j in (0, 2):
            A(f"v_pk_fma_f32 {v(VS+j,2)}, {v(d0+j,2)}, {v(pc+j,2)}, {v(VIA+j,2)}")
        for j in (0, 2):
            A(f"v_pk_mul_f32 {v(VU+j,2)}, {v(VH+j,2)}, {v(VD+j,2)}")
        for j in (0, 2):
            A(f"v_pk_fma_f32 {v(VN+j,2)}, {v(VN+j,2)}, {v(VS+j,2)}, {v(VU+j,2)}")
            A(f"v_pk_mul_f32 {v(VD+j,2)}, {v(VD+j,2)}, {v(VS+j,2)}")
        A(f"s_cmp_eq_u32 s{S_REM}, {k+1}")
        A(f"s_cbranch_scc1 K2_FL{k}")
        L(f"K2_BK{k}")
    A(f"v_add_u32 v{VRI}, 128, v{VRI}")
    A(f"v_add_u32 v{VRA}, v{VINC}, v{VRA}")
    A(f"s_add_u32 s{S_Q}, s{S_Q}, 8")
    A(f"s_sub_u32 s{S_REM}, s{S_REM}, 8")
    A(f"s_xor_b32 s{S_PAR}, s{S_PAR}, 1")
    A("s_cbranch_scc0 K2_NOPW")
    powers()
    mapread()
    L("K2_NOPW")
    if PRIO:
        TH = [int(x) for x in opt("prth", "24,16,8").split(",")]
        A(f"s_sub_u32 s3, s{S_Q1}, s{S_Q}")
        A(f"s_cmp_gt_i32 s3, {TH[0]}")
        A("s_cbranch_scc1 K2_PRX")
        A("s_setprio 2")
        A(f"s_cmp_gt_i32 s3, {TH[1]}")
        A("s_cbranch_scc1 K2_PRX")
        A("s_setprio 1")
        A(f"s_cmp_gt_i32 s3, {TH[2]}")
        A("s_cbranch_scc1 K2_PRX")
        A("s_setprio 0")
        L("K2_PRX")
    A(f"s_sub_u32 s3, s{S_Q}, s{S_RUN}")
    A("s_cmp_lt_u32 s3, 16")
    A("s_cbranch_scc1 K2_LOOP")
    def resolve(tag):
        for j in (0, 2):
            A(f"v_pk_mul_f32 {v(VN+j,2)}, {v(VN+j,2)}, {v(VIA+j,2)}")
        A(f"v_pk_add_f32 {v(VH,2)}, {v(VD,2)}, {v(VD+2,2)}")
        for j in (0, 2):
            A(f"v_pk_mul_f32 {v(VU+j,2)}, {v(VN+j,2)}, {v(VT+j,2)}")
        A(f"v_pk_fma_f32 {v(VH,2)}, {v(VU,2)}, 0, {v(VH,2)} op_sel_hi:[1,0,1]")
        A(f"v_pk_fma_f32 {v(VH,2)}, {v(VU+2,2)}, 0, {v(VH,2)} op_sel_hi:[1,0,1]")
        A(f"v_add_f32 v{VH}, v{VH}, v{VH+1}")
        A(f"v_cmp_ngt_f32 vcc, s{S_BIG}, v{VH}")
        A(f"s_cbranch_vccz K2_FOK{tag}")
        A(f"s_call_b64 {s2(S_RET2)}, K2_SLOW")
        L(f"K2_FOK{tag}")
        for j in (0, 2):
            A(f"v_pk_add_f32 {v(VACC+j,2)}, {v(VACC+j,2)}, {v(VU+j,2)}")
    for i in range(4):
        A(f"v_rcp_f32 v{VT+i}, v{VD+i}")
    A(f"s_sub_u32 s{S_QB}, s{S_Q}, 1")
    resolve("R")
    for i in range(4):
        A(f"v_mov_b32 v{VN+i}, 0")
        A(f"v_mov_b32 v{VD+i}, 1.0")
    A(f"s_mov_b32 s{S_RUN}, s{S_Q}")
    A("s_branch K2_LOOP")
    for k in range(8):
        L(f"K2_FL{k}")
        A(f"s_call_b64 {s2(S_RET)}, K2_FLUSH")
        A(f"s_cbranch_scc0 K2_BK{k}")
        A(f"s_branch K2_MAINDONE")
    L("K2_FLUSH")
    for i in range(4):
        A(f"v_rcp_f32 v{VT+i}, v{VD+i}")
    A(f"s_ff1_i32_b64 s{S_NODE}, {s2(S_NE)}")
    A(f"s_max_i32 s{S_NODE}, s{S_NODE}, 0")
    A(f"s_bitset0_b64 {s2(S_NE)}, s{S_NODE}")
    A(f"s_mul_i32 s8, s{S_NODE}, {RS_}")
    A(f"v_add_u32 v{VNX}, s8, v{V_LOFF}")
    A(f"ds_read_b128 {v(VIAN,4)}, v{VNX} offset:{IA}")
    A(f"v_add_u32 v{VNX}, v{VNX}, v{VG4}")
    A(f"ds_read_b32 v{VPN}, v{VNX}")
    A(f"v_readlane_b32 s{S_END}, v{V_END}, s{S_NODE}")
    A(f"s_add_u32 s{S_QB}, s{S_Q}, s{S_REM}")
    A(f"s_sub_u32 s{S_QB}, s{S_QB}, 1")
    resolve("F")
    A(f"v_mov_b32 v{VN}, 0")
    A(f"v_mov_b32 v{VN+1}, 0")
    A(f"v_permlane32_swap_b32 v{VACC}, v{VACC+2}")
    A(f"v_permlane32_swap_b32 v{VACC+1}, v{VACC+3}")
    A(f"v_mov_b32 v{VN+2}, 0")
    A(f"v_pk_add_f32 {v(VU,2)}, {v(VACC,2)}, {v(VACC+2,2)}")
    A(f"v_mov_b32 v{VN+3}, 0")
    A(f"v_mov_b32 v{VD}, 1.0")
    A(f"v_permlane16_swap_b32 v{VU}, v{VU+1}")
    A(f"v_mov_b32 v{VD+1}, 1.0")
    A(f"v_add_f32 v{VU}, v{VU}, v{VU+1}")
    A(f"v_add_f32 v{VU}, v{VU}, v{VPREV}")
    A(f"ds_write_b32 v{VDST}, v{VU}")
    A(f"s_add_u32 s{S_RUN}, s{S_QB}, 1")
    A(f"s_min_u32 s{S_REM}, s{S_END}, s{S_Q1}")
    A(f"s_sub_u32 s{S_REM}, s{S_REM}, s{S_Q}")
    A(f"s_mov_b32 s{S_CNODE}, s{S_NODE}")
    A(f"v_mov_b32 v{VDST}, v{VNX}")
    A(f"v_mov_b32 v{VD+2}, 1.0")
    A(f"v_mov_b32 v{VD+3}, 1.0")
    for i in range(4):
        A(f"v_mov_b32 v{VACC+i}, 0")
    A("s_waitcnt lgkmcnt(1)")
    for i in range(4):
        A(f"v_mov_b32 v{VIA+i}, v{VIAN+i}")
    A(f"v_mov_b32 v{VPREV}, v{VPN}")
    A(f"s_cmp_eq_u32 s{S_RUN}, s{S_Q1}")
    A(f"s_setpc_b64 {s2(S_RET)}")
    L("K2_SLOW")
    if DBG: A("s_add_u32 s93, s93, 1")
    for i in range(4):
        A(f"v_mov_b32 v{VU+i}, 0")
    A(f"s_mov_b32 s{S_I}, s{S_RUN}")
    A(f"s_mov_b32 s15, 0x{NEGL:x}")
    A(f"v_lshrrev_b32 v{SL+4}, 1, v{V_LOFF}")
    L("K2_SLOWL")
    A(f"s_lshl_b32 s12, s{S_I}, 4")
    A(f"s_add_u32 s12, s12, {SI}")
    A(f"v_add_u32 v{SL}, s12, v{VG4}")
    A(f"ds_read_b32 v{SL+2}, v{SL}")
    A("s_movk_i32 s12, 0x4000")
    A(f"buffer_load_dwordx2 {v(VN,2)}, v{SL+4}, {s4(SRD_G)}, s12 offen")
    A(f"v_mov_b32 v{SL+1}, v{V_LOFF}")
    A("s_waitcnt lgkmcnt(0)")
    A(f"v_and_b32 v{SL}, 0xffff, v{SL+2}")
    A(f"buffer_load_dwordx4 {v(VT,4)}, {v(SL,2)}, {s4(SRD_T)}, 0 idxen offen")
    A(f"v_and_b32 v{SL+3}, 0xffff0000, v{SL+2}")
    A(f"v_lshlrev_b32 v{SL+5}, 7, v{SL}")
    A("s_waitcnt vmcnt(0)")
    A(f"v_lshlrev_b32 v{VS}, 16, v{VN}")
    A(f"v_and_b32 v{VS+1}, 0xffff0000, v{VN}")
    A(f"v_lshlrev_b32 v{VS+2}, 16, v{VN+1}")
    A(f"v_and_b32 v{VS+3}, 0xffff0000, v{VN+1}")
    for i in range(4):
        A(f"v_mul_f32 v{VS+i}, v{VS+i}, v{SL+3}")
    A(f"v_lshlrev_b64 {v(VH,2)}, 16, {v(VT,2)}")
    A(f"v_lshlrev_b64 {v(VH+2,2)}, 16, {v(VT+2,2)}")
    A("s_mov_b32 s13, 0")
    L("K2_SLOWK")
    A(f"buffer_load_dwordx2 {v(SL+2,2)}, v{SL+5}, {s4(SRD_X)}, s13 offen")
    A("s_lshl_b32 s14, s13, 6")
    A("s_add_u32 s14, s14, 0x2000")
    for j in range(4):
        A(f"buffer_load_dwordx2 {v(VN+2*j,2)}, v{SL+4}, {s4(SRD_G)}, s14 offen offset:{128*j}")
    A("s_waitcnt vmcnt(0)")
    for j in range(4):
        src = SL + 2 + (j >> 1)
        if j & 1: A(f"v_and_b32 v{VT}, 0xffff0000, v{src}")
        else: A(f"v_lshlrev_b32 v{VT}, 16, v{src}")
        for i in range(4):
            w = VN + 2*j + (i >> 1)
            if i & 1: A(f"v_and_b32 v{VT+1}, 0xffff0000, v{w}")
            else: A(f"v_lshlrev_b32 v{VT+1}, 16, v{w}")
            A(f"v_fma_f32 v{VS+i}, v{VT}, v{VT+1}, v{VS+i}")
    A("s_add_u32 s13, s13, 8")
    A("s_cmp_lt_u32 s13, 128")
    A("s_cbranch_scc1 K2_SLOWK")
    A(f"s_mul_i32 s12, s{S_CNODE}, {RS_}")
    A(f"v_add_u32 v{SL+2}, s12, v{V_LOFF}")
    A(f"ds_read_b128 {v(VT,4)}, v{SL+2} offset:{XAL}")
    A("s_waitcnt lgkmcnt(0)")
    for i in range(4):
        A(f"v_fma_f32 v{VS+i}, v{VS+i}, s15, v{VT+i}")
    for i in range(4):
        A(f"v_exp_f32 v{VS+i}, v{VS+i}")
    A("s_nop 0")
    for i in range(4):
        A(f"v_add_f32 v{VS+i}, 1.0, v{VS+i}")
    for i in range(4):
        A(f"v_rcp_f32 v{VS+i}, v{VS+i}")
    A("s_nop 0")
    for i in range(4):
        A(f"v_fma_f32 v{VU+i}, v{VH+i}, v{VS+i}, v{VU+i}")
    A(f"s_add_u32 s{S_I}, s{S_I}, 1")
    A(f"s_cmp_le_u32 s{S_I}, s{S_QB}")
    A("s_cbranch_scc1 K2_SLOWL")
    A(f"s_setpc_b64 {s2(S_RET2)}")
    L("K2_GENERAL")
    A(f"s_mov_b32 s{S_MODE}, 1")
    A(f"s_mov_b32 s{S_W}, -1")
    A("s_branch K2_NEXTWIN")
    L("K2_MAINDONE")
    if PRIO: A("s_setprio 0")
    A("s_waitcnt lgkmcnt(0)")
    stamp(5)
    A("s_barrier")
    stamp(6)
    A(f"s_cmp_gt_u32 s{S_WAVE}, 12")
    A("s_cbranch_scc1 K2_NOACC")
    A(f"ds_read_b128 v[24:27], v{V_PADDR} offset:{AGG}")
    A(f"v_lshrrev_b32 v28, 2, v{V_LOFF}")
    A(f"ds_read_b32 v29, v28 offset:{SPN}")
    A(f"v_lshrrev_b32 v31, 4, v0")
    A("s_waitcnt lgkmcnt(0)")
    A("v_lshrrev_b32 v30, 2, v29")
    A(f"v_cmp_eq_u32 vcc, s{S_WAVE}, v30")
    A("s_and_b32 s8, vcc_lo, 0xffff")
    A("s_cbranch_scc0 K2_NOSP")
    L("K2_SPL")
    A("s_ff1_i32_b32 s9, s8")
    A("s_bitset0_b32 s8, s9")
    A("v_readlane_b32 s10, v29, s9")
    A("s_lshl_b32 s9, s9, 8")
    A(f"s_add_u32 s9, s9, {SP}")
    A(f"v_add_u32 v30, s9, v{V_LOFF}")
    A(f"ds_read_b128 v[32:35], v30")
    A("v_cmp_eq_u32 vcc, s10, v31")
    A("s_waitcnt lgkmcnt(0)")
    A("s_mov_b64 exec, vcc")
    A(f"v_pk_add_f32 v[24:25], v[24:25], v[32:33]")
    A(f"v_pk_add_f32 v[26:27], v[26:27], v[34:35]")
    A("s_mov_b64 exec, -1")
    A("s_cmp_lg_u32 s8, 0")
    A("s_cbranch_scc1 K2_SPL")
    L("K2_NOSP")
    A(f"s_cmp_eq_u32 s{S_MODE}, 0")
    A("s_cbranch_scc1 K2_EPI")
    A(f"ds_write_b128 v{V_PADDR}, v[24:27] offset:{AGG}")
    A("s_waitcnt lgkmcnt(0)")
    L("K2_NOACC")
    A(f"s_cmp_eq_u32 s{S_MODE}, 0")
    A("s_cbranch_scc1 K2_END")
    L("K2_NEXTWIN")
    A(f"s_add_u32 s{S_W}, s{S_W}, 1")
    A(f"s_cmp_ge_u32 s{S_W}, {2*NCH}")
    A("s_cbranch_scc1 K2_LASTWIN")
    A(f"s_lshr_b32 s9, s{S_W}, 1")
    A(f"s_and_b32 s10, s{S_W}, 1")
    A(f"s_lshl_b32 s4, s9, {OGL+2}")
    A("v_mov_b32 v22, s4")
    A(f"buffer_load_dword v{V_OFF}, v22, {s4(SRD_A)}, s{S_OFFB} offen")
    A("s_mul_i32 s11, s10, 3072")
    A("s_lshl_b32 s10, s10, 10")
    A("s_waitcnt vmcnt(0)")
    A(f"v_readfirstlane_b32 s4, v{V_OFF}")
    A("s_and_b32 s5, s4, 0xffff")
    A("s_cmp_le_u32 s5, s11")
    A("s_cbranch_scc1 K2_NEXTWIN")
    A("s_sub_u32 s5, s5, s11")
    A("s_lshr_b32 s4, s4, 16")
    A(f"s_mul_i32 s8, s9, {CS//16}")
    A("s_add_u32 s4, s4, s8")
    A("s_add_u32 s4, s4, s10")
    A(f"v_add_lshl_u32 v{V_RADDR}, s4, v0, 4")
    A("v_mul_u32_u24 v22, 3, v0")
    A("v_sub_u32 v23, s5, v22 clamp")
    A("v_mov_b32 v51, 0.5")
    for j in range(3):
        A(f"v_cmp_lt_u32 {s2(S_M+2*j)}, {j}, v23")
    A(f"v_cndmask_b32 v{V_A}, v51, v{V_RADDR}, {s2(S_M)}")
    A(f"buffer_load_dwordx4 {v(V_R,4)}, v{V_A}, {s4(SRD_REC)}, 0 offen")
    A("s_barrier")
    A(f"v_lshlrev_b32 v52, 2, v{V_LANE}")
    A("v_mov_b32 v53, 0")
    A(f"ds_write_b32 v52, v53 offset:{CNT}")
    A("s_waitcnt vmcnt(0) lgkmcnt(0)")
    A("s_barrier")
    for k in range(3):
        r, j = divmod(k, 3)
        nodebyte(V_LA+k, V_R+4*r+3, j)
    for k in range(3):
        A(f"s_mov_b64 exec, {s2(S_M+2*k)}")
        A(f"ds_add_rtn_u32 v{56+k}, v{V_LA+k}, v{V_FOUR} offset:{CNT}")
    A("s_mov_b64 exec, -1")
    A("s_waitcnt lgkmcnt(0)")
    A("s_barrier")
    A(f"ds_read_b32 v53, v52 offset:{CNT}")
    A("s_waitcnt lgkmcnt(0)")
    A("v_add_u32 v54, 12, v53")
    A("v_lshrrev_b32 v54, 4, v54")
    A(f"v_mov_b32 v{V_END}, v54")
    scan64(V_END)
    A(f"v_cmp_ne_u32 s[10:11], 0, v54")
    A(f"v_mov_b32 v{V_DEL}, {SLOT}")
    A(f"v_readlane_b32 s12, v{V_END}, 63")
    A(f"v_sub_u32 v{V_BQ}, v{V_END}, v54")
    A(f"v_lshl_add_u32 v55, v{V_BQ}, 4, v{V_DEL}")
    for k in range(3):
        A(f"ds_bpermute_b32 v{64+k}, v{V_LA+k}, v55")
    A(f"v_mov_b32 v62, 0x{DUMMY:x}")
    A("v_add_u32 v63, v55, v53")
    A("v_lshlrev_b32 v54, 4, v54")
    A("v_sub_u32 v54, v54, v53")
    A("s_waitcnt lgkmcnt(0)")
    for k in range(3):
        r, j = divmod(k, 3)
        A(f"s_mov_b64 exec, {s2(S_M+2*k)}")
        A(f"v_add_u32 v{64+k}, v{64+k}, v{56+k}")
        A(f"ds_write_b32 v{64+k}, v{V_R+4*r+j}")
    A("s_mov_b64 exec, -1")
    for j in range(3):
        A(f"v_cmpx_lt_u32 vcc, {4*j}, v54")
        A(f"ds_write_b32 v63, v62 offset:{4*j}")
    A("s_mov_b64 exec, -1")
    A(f"s_mov_b64 {s2(S_NE)}, s[10:11]")
    A("s_waitcnt lgkmcnt(0)")
    A("s_barrier")
    A("s_branch K2_SETUP")
    L("K2_LASTWIN")
    A(f"s_cmp_gt_u32 s{S_WAVE}, 12")
    A("s_cbranch_scc1 K2_END")
    A(f"ds_read_b128 v[24:27], v{V_PADDR} offset:{AGG}")
    L("K2_EPI")
    srd(SRD_A, OUT_, OUT_+1, N*128)
    A(f"s_mov_b32 s4, 0x{NEGL:x}")
    A(f"s_mul_i32 s5, s2, {BN*128}")
    A("v_lshlrev_b32 v32, 3, v0")
    A(f"v_cmp_gt_u32 vcc, {BN*16}, v0")
    A("s_waitcnt lgkmcnt(0)")
    for i in range(4):
        A(f"v_mul_f32 v{28+i}, s4, v{24+i}")
    for i in range(4):
        A(f"v_exp_f32 v{28+i}, v{28+i}")
    A("s_nop 0")
    for i in range(4):
        A(f"v_add_f32 v{28+i}, 1.0, v{28+i}")
    for i in range(4):
        A(f"v_rcp_f32 v{28+i}, v{28+i}")
    A("s_nop 0")
    for i in range(4):
        A(f"v_mul_f32 v{28+i}, v{24+i}, v{28+i}")
    A("v_cvt_pk_bf16_f32 v24, v28, v29")
    A("v_cvt_pk_bf16_f32 v25, v30, v31")
    A("s_mov_b64 exec, vcc")
    A(f"buffer_store_dwordx2 v[24:25], v32, {s4(SRD_A)}, s5 offen")
    rstamp(9)
    dbg_dump(10, S_WAVE, "K2_DBGX", 17, 4, 0, 2, 1)
    L("K2_END")
    A("s_endpgm")

def desc(name, nv, ns=102):
    acc = (nv + 3) // 4 * 4
    return f""".p2align 6
.amdhsa_kernel {name}
  .amdhsa_next_free_vgpr {nv}
  .amdhsa_next_free_sgpr {ns}
  .amdhsa_accum_offset {acc}
  .amdhsa_group_segment_fixed_size 0
  .amdhsa_kernarg_size 80
  .amdhsa_user_sgpr_count 2
  .amdhsa_user_sgpr_kernarg_segment_ptr 1
  .amdhsa_system_sgpr_workgroup_id_x 1
.end_amdhsa_kernel
"""

hdr = f"""; EGC message passing: k1 = edge binning + source-node table, k2 = per-bucket gather/accumulate
; @launch kernel=k1_kernel grid=({NCH+NG+1},1,1) block=({B1},1,1) lds={K1_LDS}
; @launch kernel=k2_kernel grid=({NB},1,1) block=(1024,1,1) lds={K2_LDS}
.amdgcn_target "amdgcn-amd-amdhsa--gfx950"
.text
"""
k1()
k2()
txt = hdr + "\n".join(out) + "\n" + '.section .rodata,"a"\n' + desc("k1_kernel", 112) + desc("k2_kernel", 126)
dst = sys.argv[1] if len(sys.argv) > 1 and not sys.argv[1].startswith("--") else "gather_scatter__edge_featured_mpnn_egc__graph.s"
open(dst, "w").write(txt)
print("wrote", dst, len(txt))
```

```python
import sys, struct, math

def opt0(name, default):
    r = [a[len(name)+3:] for a in sys.argv if a.startswith("--" + name + "=")]
    return r[0] if r else default
N = 12500; E = 800000
NB = 256; BN = 49
CH = 5000; NCH = 160
NG = 79
B1 = 640
T_OFF = 0; REC_OFF = 8 << 20; OFF_OFF = 16 << 20; FR_OFF = 17 << 20
OG = int(opt0("og", "32")); OGL = OG.bit_length() - 1
OFF_GS = 256*OG*4
CS = 29440
FR_B = 16384; FR_S = 17408; FR_SIZE = 17408 + 512
LOG2E = math.log2(math.e)
def f32bits(x): return struct.unpack("<I", struct.pack("<f", x))[0]
NEGL = f32bits(-LOG2E)
KLOG = 2.0
POLY = [1.0/math.factorial(k) for k in range(1, 9)]
def opt(name, default):
    r = [a[len(name)+3:] for a in sys.argv if a.startswith("--" + name + "=")]
    return r[0] if r else default
def flag(name): return ("--" + name) in sys.argv

out = []
def A(s): out.append("    " + s)
def L(s): out.append(s + ":")

def srd(r, lo, hi, nrec, add=0):
    if add:
        A(f"s_add_u32 s{r}, s{lo}, 0x{add:x}")
        A(f"s_addc_u32 s{r+1}, s{hi}, 0")
        A(f"s_and_b32 s{r+1}, s{r+1}, 0xffff")
    else:
        A(f"s_mov_b32 s{r}, s{lo}")
        A(f"s_and_b32 s{r+1}, s{hi}, 0xffff")
    A(f"s_mov_b32 s{r+2}, 0x{nrec:x}")
    A(f"s_mov_b32 s{r+3}, 0x20000")

def v(r, n=1):
    return f"v{r}" if n == 1 else f"v[{r}:{r+n-1}]"
def s4(r): return f"s[{r}:{r+3}]"
def s2(r): return f"s[{r}:{r+1}]"

def scan64(x, op="v_add_u32_dpp"):
    for sh in (1, 2, 4, 8):
        A("s_nop 1")
        A(f"{op} v{x}, v{x}, v{x} row_shr:{sh} row_mask:0xf bank_mask:0xf")
    A("s_nop 1")
    A(f"{op} v{x}, v{x}, v{x} row_bcast:15 row_mask:0xa bank_mask:0xf")
    A("s_nop 1")
    A(f"{op} v{x}, v{x}, v{x} row_bcast:31 row_mask:0xc bank_mask:0xf")

DBG = flag("dbg")
def stamp(idx):
    if DBG:
        A("s_memtime s[98:99]")
        A("s_waitcnt lgkmcnt(0)")
        A(f"s_mov_b32 s{86+idx}, s98")
def rstamp(idx):
    if DBG:
        A("s_memrealtime s[98:99]")
        A("s_waitcnt lgkmcnt(0)")
        A(f"s_mov_b32 s{86+idx}, s98")
def dbg_dump(nst, wave_sgpr, lab, wg=0, nw=4, slot0=0, wsh=0, kidx=0):
    if DBG:
        A(f"s_cmp_lg_u32 s{wave_sgpr}, 0")
        A(f"s_cbranch_scc1 {lab}W")
        srd(96, WS_, WS_+1, 1 << 20, (18 << 20) + kidx*65536)
        A("s_getreg_b32 s3, hwreg(HW_REG_XCC_ID)")
        A("s_mov_b64 exec, 1")
        A("v_mov_b32 v4, s3")
        A("s_getreg_b32 s3, hwreg(HW_REG_HW_ID)")
        A("v_mov_b32 v5, s3")
        A("s_lshl_b32 s3, s2, 4")
        A("v_mov_b32 v1, s3")
        A("v_mov_b32 v2, s94")
        A("v_mov_b32 v3, s95")
        A("buffer_store_dwordx4 v[2:5], v1, s[96:99], 0 offen")
        L(lab + "W")
        A(f"s_cmp_lg_u32 s2, {wg}")
        A(f"s_cbranch_scc1 {lab}")
        A(f"s_and_b32 s3, s{wave_sgpr}, {(1<<wsh)-1}")
        A(f"s_cmp_lg_u32 s3, {(1<<wsh)-1}")
        A(f"s_cbranch_scc1 {lab}")
        A(f"s_lshr_b32 s3, s{wave_sgpr}, {wsh}")
        A(f"s_cmp_ge_u32 s3, {nw}")
        A(f"s_cbranch_scc1 {lab}")
        A("s_load_dwordx2 s[98:99], s[0:1], 64")
        A("s_waitcnt lgkmcnt(0)")
        srd(100-4, 98, 99, 256)
        A("s_mov_b64 exec, 1")
        A(f"s_mul_i32 s3, s3, 64")
        A("v_mov_b32 v1, s3")
        for i in range(nst):
            A(f"v_mov_b32 v2, s{86+i}")
            A(f"buffer_store_dword v2, v1, s[96:99], 0 offen offset:{4*i+64*slot0}")
        L(lab)
X_, E_, SRC_, DST_, U_, V_, G_, OUT_, WS_ = 16, 18, 20, 22, 24, 26, 28, 30, 32

def tr_lane_addr(dst, lane, h, tmp):
    A(f"v_bfe_u32 v{dst}, v{lane}, 2, 2")
    A(f"v_lshl_add_u32 v{dst}, v{h}, 3, v{dst}")
    A(f"v_lshlrev_b32 v{dst}, 7, v{dst}")
    A(f"v_and_b32 v{tmp}, 1, v{lane}")
    A(f"v_lshl_add_u32 v{dst}, v{tmp}, 5, v{dst}")
    A(f"v_bfe_u32 v{tmp}, v{lane}, 4, 1")
    A(f"v_lshl_add_u32 v{dst}, v{tmp}, 4, v{dst}")
    A(f"v_bfe_u32 v{tmp}, v{lane}, 1, 1")
    A(f"v_lshl_add_u32 v{dst}, v{tmp}, 3, v{dst}")

K1_XT = 16384 + 10*4608
K1_LDS = K1_XT + 160*144
SC = " " + opt0("sc", "sc1").replace("+", " ").replace("none", "")
def k1():
    out.append(".globl k1_kernel")
    out.append(".p2align 8")
    out.append(".type k1_kernel,@function")
    L("k1_kernel")
    A(f"s_cmp_gt_u32 s2, {NCH+NG}")
    A("s_cbranch_scc1 K1_END")
    stamp(0)
    rstamp(8)
    A("s_load_dwordx16 s[16:31], s[0:1], 0")
    A("s_load_dwordx2 s[32:33], s[0:1], 72")
    A("v_lshrrev_b32 v1, 6, v0")
    A("v_lshlrev_b32 v3, 4, v0")
    A("v_readfirstlane_b32 s7, v1")
    A(f"s_cmp_eq_u32 s2, {NCH+NG}")
    A("s_cbranch_scc1 K1_FRAG")
    GF = flag("gemmfirst")
    if GF:
        A(f"s_cmp_lt_u32 s2, {NG}")
        A("s_cbranch_scc1 K1_GEMM")
        A(f"s_sub_u32 s34, s2, {NG}")
    else:
        A(f"s_cmp_ge_u32 s2, {NCH}")
        A("s_cbranch_scc1 K1_GEMM")
        A(f"s_mov_b32 s34, s2")
    HIST, BASE, STAGE = 0, 1024, 2048
    A("v_and_b32 v1, 0xff, v0")
    A("v_lshlrev_b32 v1, 2, v1")
    A("v_mov_b32 v2, 0")
    A("ds_write_b32 v1, v2")
    A("v_lshlrev_b32 v4, 3, v0")
    A(f"s_mul_i32 s3, s34, {CH*4}")
    A(f"s_add_u32 s4, s3, {CH*2}")
    A(f"s_mul_i32 s5, s34, {CH*2}")
    A(f"s_add_u32 s6, s5, {CH}")
    A(f"v_cmp_gt_u32 vcc, {CH//8}, v0")
    A("s_movk_i32 s10, -49")
    A("v_mov_b32 v5, 1")
    A("s_waitcnt lgkmcnt(0)")
    srd(36, DST_, DST_+1, E*4)
    A("s_mov_b64 s[8:9], vcc")
    A("s_mov_b64 exec, vcc")
    A("buffer_load_dwordx4 v[8:11], v3, s[36:39], s3 offen")
    A("buffer_load_dwordx4 v[12:15], v3, s[36:39], s4 offen")
    srd(40, SRC_, SRC_+1, E*4)
    A("buffer_load_dwordx4 v[16:19], v3, s[40:43], s3 offen")
    A("buffer_load_dwordx4 v[20:23], v3, s[40:43], s4 offen")
    srd(44, E_, E_+1, E*2)
    A("buffer_load_dwordx2 v[24:25], v4, s[44:47], s5 offen")
    A("buffer_load_dwordx2 v[26:27], v4, s[44:47], s6 offen")
    srd(48, WS_, WS_+1, NCH*CS, REC_OFF)
    srd(52, WS_, WS_+1, 256*1024, OFF_OFF)
    A("s_barrier")
    stamp(1)
    for half in range(2):
        A(f"s_waitcnt vmcnt({5-half})")
        if half == 0: stamp(2)
        for i in range(4*half, 4*half+4):
            A(f"v_mul_u32_u24 v{28+i}, 5350, v{8+i}")
            A(f"v_lshrrev_b32 v{60+i}, 18, v{28+i}")
            A(f"v_lshlrev_b32 v{28+i}, 2, v{60+i}")
            A(f"ds_add_rtn_u32 v{36+i}, v{28+i}, v5")
            A(f"v_lshlrev_b32 v{8+i}, 2, v{8+i}")
            A(f"v_mad_i32_i24 v{8+i}, v{28+i}, s10, v{8+i}")
    A("s_mov_b32 s11, 0xffff0000")
    A("s_movk_i32 s13, 21846")
    for i in range(8):
        A(f"s_waitcnt lgkmcnt({7-i})")
        A(f"v_mul_u32_u24 v{44+i}, s13, v{36+i}")
        A(f"v_lshrrev_b32 v{44+i}, 16, v{44+i}")
        A(f"v_mad_u32_u24 v{52+i}, v{44+i}, 13, v{36+i}")
        A(f"v_add_u32 v{44+i}, v{44+i}, v{36+i}")
    stamp(3)
    A("s_barrier")
    stamp(4)
    A("s_mov_b64 exec, -1")
    A("v_and_b32 v1, 63, v0")
    A("v_lshlrev_b32 v1, 4, v1")
    A(f"ds_read_b128 v[60:63], v1 offset:{HIST}")
    A("s_waitcnt lgkmcnt(0)")
    for i in range(4):
        A(f"v_add_u32 v{80+i}, 2, v{60+i}")
    for i in range(4):
        A(f"v_mul_u32_u24 v{80+i}, s13, v{80+i}")
    for i in range(4):
        A(f"v_lshrrev_b32 v{80+i}, 16, v{80+i}")
    A("v_add_u32 v65, v80, v81")
    A("v_add_u32 v66, v65, v82")
    A("v_add_u32 v67, v66, v83")
    A("v_mov_b32 v68, v67")
    scan64(68)
    A("s_nop 0")
    A("v_readlane_b32 s14, v68, 63")
    A("v_sub_u32 v68, v68, v67")
    A("v_add_u32 v69, v68, v80")
    A("v_add_u32 v70, v68, v65")
    A("v_add_u32 v71, v68, v66")
    A(f"v_mov_b32 v6, {STAGE}")
    for i in range(4):
        A(f"v_lshl_add_u32 v{72+i}, v{68+i}, 4, v6")
    A(f"ds_write_b128 v1, v[72:75] offset:{BASE}")
    A("s_waitcnt vmcnt(0)")
    A("s_cmp_lg_u32 s7, 9")
    A("s_cbranch_scc1 K1_NOOFF")
    for i in range(4):
        A(f"v_lshl_or_b32 v{76+i}, v{68+i}, 16, v{60+i}")
    A(f"s_lshl_b32 s12, s34, {OGL+2}")
    A(f"v_lshrrev_b32 v2, {OGL+2}, v1")
    A(f"v_and_b32 v80, {OG*4-1}, v1")
    A(f"v_lshl_or_b32 v2, v2, {OGL+10}, v80")
    A(f"buffer_store_dwordx4 v[76:79], v2, s[52:55], s12 offen{SC}")
    L("K1_NOOFF")
    A("s_add_u32 s14, s14, 7")
    A("s_and_b32 s14, s14, -8")
    A("s_lshl_b32 s14, s14, 4")
    A(f"s_sub_u32 s14, s14, {B1*32}")
    A("v_cmp_gt_u32 vcc, s14, v3")
    A("s_waitcnt lgkmcnt(0)")
    A("s_nop 0")
    A("v_cndmask_b32 v7, 0.5, v3, vcc")
    A("s_mov_b64 exec, s[8:9]")
    for i in range(8):
        A(f"ds_read_b32 v{60+i}, v{28+i} offset:{BASE}")
    for i in range(4):
        A(f"v_lshl_or_b32 v{16+2*i}, v{24+i}, 16, v{16+2*i}")
        A(f"v_and_or_b32 v{17+2*i}, v{24+i}, s11, v{17+2*i}")
    for i in range(8):
        A(f"s_waitcnt lgkmcnt({7+i})")
        A(f"v_lshl_add_u32 v{44+i}, v{44+i}, 2, v{60+i}")
        A(f"v_add_u32 v{52+i}, v{52+i}, v{60+i}")
        A(f"ds_write_b32 v{44+i}, v{16+i}")
        A(f"ds_write_b8 v{52+i}, v{8+i} offset:12")
    A(f"s_mul_i32 s12, s34, {CS}")
    A(f"s_add_u32 s13, s12, {B1*16}")
    A(f"s_add_u32 s14, s12, {B1*32}")
    A("s_mov_b64 exec, -1")
    A("s_waitcnt lgkmcnt(0)")
    A("s_barrier")
    stamp(5)
    for k in range(3):
        A(f"ds_read_b128 v[{8+4*k}:{11+4*k}], v3 offset:{STAGE+B1*16*k}")
    for k in range(3):
        A(f"s_waitcnt lgkmcnt({2-k})")
        A(f"buffer_store_dwordx4 v[{8+4*k}:{11+4*k}], v{7 if k == 2 else 3}, s[48:51], s{12+k} offen{SC}")
    if DBG: A("s_waitcnt vmcnt(0)")
    stamp(6)
    rstamp(9)
    dbg_dump(10, 7, "K1_DBGB", 117, 2, 0, 0)
    A("s_endpgm")
    L("K1_GEMM")
    if GF: A(f"s_mov_b32 s3, s2")
    else: A(f"s_sub_u32 s3, s2, {NCH}")
    A("s_cmp_ge_u32 s7, 5")
    A("s_cselect_b32 s6, 1, 0")
    A("s_mul_i32 s4, s6, 5")
    A("s_sub_u32 s4, s7, s4")
    A("v_and_b32 v1, 63, v0")
    A("v_and_b32 v2, 31, v1")
    A("v_lshrrev_b32 v4, 5, v1")
    A("s_mul_i32 s8, s3, 160")
    A("s_lshl_b32 s9, s4, 5")
    A("s_add_u32 s8, s8, s9")
    A("v_add_u32 v2, s9, v2")
    A("v_mul_u32_u24 v5, 144, v2")
    A("v_lshl_add_u32 v5, v4, 4, v5")
    A("v_lshrrev_b32 v107, 3, v0")
    A("v_mul_u32_u24 v107, 144, v107")
    A("v_and_b32 v7, 7, v0")
    A("v_lshl_add_u32 v107, v7, 4, v107")
    A(f"v_add_u32 v107, {K1_XT}, v107")
    A(f"s_mul_i32 s12, s3, {160*128}")
    A(f"s_add_u32 s13, s12, {80*128}")
    A("v_and_b32 v108, 0x1ff0, v3")
    A("s_waitcnt lgkmcnt(0)")
    srd(48, X_, X_+1, N*128)
    A("buffer_load_dwordx4 v[16:19], v3, s[48:51], s12 offen")
    A("buffer_load_dwordx4 v[20:23], v3, s[48:51], s13 offen")
    srd(36, G_, G_+1, 129*128)
    A("s_movk_i32 s10, 0x2000")
    A("buffer_load_dwordx4 v[8:11], v108, s[36:39], s10 offen")
    srd(40, V_, V_+1, 8192)
    A("buffer_load_dwordx4 v[12:15], v108, s[40:43], 0 offen")
    stamp(1)
    srd(52, WS_, WS_+1, N*256, T_OFF)
    tr_lane_addr(6, 1, 4, 7)
    A("s_lshl_b32 s11, s6, 6")
    A("v_add_u32 v6, s11, v6")
    A("s_mul_i32 s11, s7, 4608")
    A("s_add_u32 s11, s11, 16384")
    A("v_and_b32 v104, 31, v1")
    A("v_mul_u32_u24 v104, 144, v104")
    A("v_lshl_add_u32 v104, v4, 6, v104")
    A("v_add_u32 v104, s11, v104")
    A("v_lshrrev_b32 v105, 3, v1")
    A("v_and_b32 v106, 7, v1")
    A("v_lshlrev_b32 v106, 4, v106")
    A("v_add_u32 v2, s8, v105")
    A("v_mul_u32_u24 v105, 144, v105")
    A("v_add3_u32 v105, v105, v106, s11")
    A("v_lshl_add_u32 v2, v2, 8, v106")
    A("s_lshl_b32 s11, s6, 7")
    A("v_add_u32 v2, s11, v2")
    for k in range(2):
        A(f"s_waitcnt vmcnt({3-k})")
        if k == 0: stamp(2)
        A(f"ds_write_b128 v107, v[{16+4*k}:{19+4*k}] offset:{80*144*k}")
    for k in range(2):
        A(f"s_waitcnt vmcnt({1-k})")
        A(f"ds_write_b128 v108, v[{8+4*k}:{11+4*k}] offset:{8192*k}")
    A("s_waitcnt lgkmcnt(0)")
    stamp(3)
    A("s_barrier")
    stamp(4)
    AX, AH, DX, DH = 40, 56, 72, 88
    for sidx in range(4):
        A(f"ds_read_b128 v[{24+4*sidx}:{27+4*sidx}], v5 offset:{K1_XT+32*sidx}")
    for sidx in range(4):
        for u in range(2):
            A(f"ds_read_b64_tr_b16 v[{AX+4*sidx+2*u}:{AX+4*sidx+2*u+1}], v6 offset:{sidx*2048+u*512}")
        for u in range(2):
            A(f"ds_read_b64_tr_b16 v[{AH+4*sidx+2*u}:{AH+4*sidx+2*u+1}], v6 offset:{8192+sidx*2048+u*512}")
    for sidx in range(4):
        A(f"s_waitcnt lgkmcnt({14-4*sidx})")
        cx = "0" if sidx == 0 else v(DX, 16)
        A(f"v_mfma_f32_32x32x16_bf16 {v(DX,16)}, {v(AX+4*sidx,4)}, {v(24+4*sidx,4)}, {cx}")
        A(f"s_waitcnt lgkmcnt({12-4*sidx})")
        ch = "0" if sidx == 0 else v(DH, 16)
        A(f"v_mfma_f32_32x32x16_bf16 {v(DH,16)}, {v(AH+4*sidx,4)}, {v(24+4*sidx,4)}, {ch}")
    A(f"s_mov_b32 s40, 0x{NEGL:x}")
    A("s_mov_b32 s41, 0x00800000")
    A("s_mov_b32 s42, 0x7fff0000")
    A("s_mov_b32 s43, 0x80000000")
    A("s_nop 7")
    A("s_nop 3")
    for i in range(16):
        A(f"v_fma_f32 v{DX+i}, s40, v{DX+i}, {KLOG}")
    for i in range(16):
        A(f"v_exp_f32 v{DX+i}, v{DX+i}")
    def comp(dst, B, lo, t1, t2):
        A(f"v_max_f32 v{t1}, abs(v{B}), s41")
        A(f"v_and_or_b32 v{t2}, v{B}, s43, v{lo}")
        A(f"v_sub_u32 v{t1}, v{t1}, v{lo}")
        A(f"v_add_u32 v{t1}, 0x8000, v{t1}")
        A(f"v_bfi_b32 v{dst}, s42, v{t1}, v{t2}")
    for grp in range(2):
        ps = [4*grp + j for j in range(4)]
        T1 = [8, 9, 10, 11]; T2 = [12, 13, 14, 15]; LO = [16, 17, 18, 19]
        for j, p in enumerate(ps):
            A(f"v_cvt_pk_bf16_f32 v{LO[j]}, v{DH+2*p}, 0")
        for j, p in enumerate(ps):
            comp(DX+2*p, DX+2*p, LO[j], T1[j], T2[j])
        for j, p in enumerate(ps):
            A(f"v_lshrrev_b32 v{LO[j]}, 16, v{DX+2*p}")
        for j, p in enumerate(ps):
            comp(DH+2*p+1, DH+2*p+1, LO[j], T1[j], T2[j])
        for j, p in enumerate(ps):
            A(f"v_lshrrev_b32 v{LO[j]}, 16, v{DH+2*p+1}")
        for j, p in enumerate(ps):
            comp(DX+2*p+1, DX+2*p+1, LO[j], T1[j], T2[j])
        for k in range(2):
            kk = 2*grp + k
            A(f"ds_write_b128 v104, v[{DX+4*kk}:{DX+4*kk+3}] offset:{16*kk}")
    A("s_waitcnt lgkmcnt(0)")
    for i in range(4):
        A(f"ds_read_b128 v[{8+4*i}:{11+4*i}], v105 offset:{8*144*i}")
    for i in range(4):
        A(f"s_waitcnt lgkmcnt({3-i})")
        A(f"buffer_store_dwordx4 v[{8+4*i}:{11+4*i}], v2, s[52:55], 0 offen offset:{2048*i if i < 2 else 2048*(i-2)}{SC}")
        if i == 1: A("v_add_u32 v2, 4096, v2")
    stamp(5)
    if DBG: A("s_waitcnt vmcnt(0)")
    stamp(6)
    rstamp(9)
    dbg_dump(10, 7, "K1_DBGG", 50 if GF else 200, 2, 2, 0)
    A("s_endpgm")
    L("K1_FRAG")
    A("s_cmp_ge_u32 s7, 8")
    A("s_cbranch_scc1 K1_END")
    A("v_and_b32 v1, 63, v0")
    A("v_lshrrev_b32 v4, 5, v1")
    A("v_and_b32 v5, 15, v1")
    A("v_lshrrev_b32 v6, 4, v1")
    A("v_lshlrev_b32 v6, 1, v6")
    A("v_lshl_add_u32 v5, v5, 3, v6")
    A("s_waitcnt lgkmcnt(0)")
    srd(36, G_, G_+1, 129*128)
    A("buffer_load_dwordx4 v[8:11], v3, s[36:39], 0 offen")
    srd(40, U_, U_+1, 8192)
    A("buffer_load_dwordx4 v[12:15], v3, s[40:43], 0 offen")
    A("s_movk_i32 s4, 0x4000")
    A("buffer_load_ushort v20, v5, s[36:39], s4 offen")
    srd(52, WS_, WS_+1, FR_SIZE, FR_OFF)
    tr_lane_addr(6, 1, 4, 7)
    A("s_lshr_b32 s4, s7, 1")
    A("s_and_b32 s5, s7, 1")
    A("s_lshl_b32 s4, s4, 13")
    A("s_lshl_b32 s5, s5, 6")
    A("s_add_u32 s4, s4, s5")
    A("v_add_u32 v6, s4, v6")
    A("v_lshlrev_b32 v2, 4, v1")
    for k in range(2):
        A(f"s_waitcnt vmcnt({2-k})")
        A(f"ds_write_b128 v3, v[{8+4*k}:{11+4*k}] offset:{8192*k}")
    A("s_waitcnt lgkmcnt(0)")
    A("s_barrier")
    A("s_cmp_eq_u32 s7, 4")
    A("s_cbranch_scc1 K1_COEF")
    A("s_cmp_gt_u32 s7, 4")
    A("s_cbranch_scc1 K1_END")
    for sidx in range(4):
        for u in range(2):
            A(f"ds_read_b64_tr_b16 v[{40+4*sidx+2*u}:{40+4*sidx+2*u+1}], v6 offset:{sidx*2048+u*512}")
    A("s_lshl_b32 s4, s7, 12")
    for sidx in range(4):
        A(f"s_waitcnt lgkmcnt({6-2*sidx})")
        A(f"buffer_store_dwordx4 v[{40+4*sidx}:{43+4*sidx}], v2, s[52:55], s4 offen offset:{1024*sidx}{SC}")
    A("s_endpgm")
    L("K1_COEF")
    A("s_waitcnt vmcnt(0)")
    A("v_lshlrev_b32 v20, 16, v20")
    A("v_and_b32 v60, 0x7fffffff, v20")
    scan64(60, "v_max_u32_dpp")
    A("s_nop 1")
    A("v_readlane_b32 s5, v60, 63")
    A("s_lshr_b32 s4, s5, 23")
    A("s_max_u32 s4, s4, 1")
    A("s_lshl_b32 s8, s4, 23")
    A("s_cmp_gt_u32 s4, 253")
    A("s_cselect_b32 s8, 0x7fc00000, s8")
    A("s_min_u32 s4, s4, 253")
    A("s_sub_u32 s4, 254, s4")
    A("s_lshl_b32 s4, s4, 23")
    A("s_or_b32 s4, s4, 0x80000000")
    A("v_mov_b32 v70, s5")
    A("v_mul_f32 v60, s4, v20")
    A("v_mul_f32 v70, s4, v70")
    A("v_mul_f32 v70, v70, v70")
    A("v_max_f32 v70, 1.0, v70")
    A("v_rcp_f32 v71, v70")
    A("v_mov_b32 v70, s8")
    for k in range(1, 8):
        A(f"v_mul_f32 v{60+k}, v{60+k-1}, v60")
    for k in range(1, 8):
        A(f"v_mul_f32 v{60+k}, 0x{f32bits(POLY[k]):x}, v{60+k}")
    for k in range(8):
        A(f"v_cvt_f16_f32 v{60+k}, v{60+k}")
    for k in range(4):
        A(f"v_pack_b32_f16 v{40+k}, v{60+2*k}, v{61+2*k}")
    A(f"s_movk_i32 s4, {FR_B}")
    A(f"buffer_store_dwordx4 v[40:43], v2, s[52:55], s4 offen{SC}")
    A("v_lshlrev_b32 v2, 3, v1")
    A(f"buffer_store_dwordx2 v[70:71], v2, s[52:55], s4 offen offset:{FR_S-FR_B}{SC}")
    L("K1_END")
    A("s_endpgm")


RS_ = 272
AGG, IA, XAL = 0, 52*RS_, 104*RS_
CNT = 156*RS_; SPN = CNT + 512; ZR = CNT + 1024
SI = CNT + 2048
CAP = 4096
PW = SI + (CAP + 256)*4
XT = PW
SLOT = PW + CAP*16 + 2560
SS = 516
SP = SLOT + 26112
K2_LDS = SP + 4096
assert PW % 16 == 0 and PW < 65536 and SLOT % 16 == 0 and K2_LDS <= 163840 and BN*SS + 8 <= 25600
DUMMY = 0x7b00

def k2():
    out.append(".globl k2_kernel")
    out.append(".p2align 8")
    out.append(".type k2_kernel,@function")
    L("k2_kernel")
    A(f"s_cmp_ge_u32 s2, {NB}")
    A("s_cbranch_scc1 K2_END")
    stamp(0)
    rstamp(8)
    if DBG: A("s_mov_b32 s93, 0")
    A("s_load_dwordx16 s[16:31], s[0:1], 0")
    A("s_load_dwordx2 s[32:33], s[0:1], 72")
    A("s_and_b32 s3, s2, 7")
    A("s_lshr_b32 s2, s2, 3")
    A("s_lshl_b32 s3, s3, 5")
    A("s_or_b32 s2, s2, s3")
    S_WAVE = 7
    SRD_T, SRD_REC, SRD_A, SRD_G, SRD_X = 36, 40, 44, 48, 52
    S_W, S_OFFB, S_MODE, S_ESC = 56, 57, 58, 59
    S_M = 60
    S_NE, S_NE2 = 60, 62
    S_QR, S_DEL, S_NN, S_NST = 64, 65, 66, 67
    S_Q, S_Q1, S_RUN, S_QB, S_REM, S_END, S_BIG, S_CNODE = 74, 75, 76, 77, 78, 79, 80, 81
    S_RET = 82
    S_I, S_NODE = 84, 85
    S_THR, S_RET2 = 6, 34
    V_LANE, V_LOFF, V_PADDR, V_FOUR, V_RADDR, V_SUB3, V_CB, V_W, V_OFF = 1, 2, 3, 4, 5, 6, 7, 8, 9
    V_B = 10
    V_SC = 14
    V_END, V_BQ, V_DEL = 18, 19, 20
    V_R = 24
    V_LA = 36
    V_A = 48
    V_XD = 52
    GA, GD, V_X = 64, 80, 96
    PFL = int(flag("pf")); PFE = int(flag("pfe")); OT = int(flag("otouch"))
    NP = PFL + OT
    def prefetch():
        A("s_and_b32 s3, s2, 31")
        A("s_mul_i32 s3, s3, 391")
        A("v_lshrrev_b32 v126, 1, v0")
        A("v_add_u32 v126, s3, v126")
        A("v_cmp_gt_u32 vcc, 782, v0")
        A("v_and_b32 v127, 1, v0")
        A("v_lshlrev_b32 v127, 7, v127")
        A("v_cndmask_b32 v126, -1, v126, vcc")
        A(f"buffer_load_dword v126, v[126:127], {s4(SRD_T)}, 0 idxen offen")
    A("v_lshrrev_b32 v22, 6, v0")
    A(f"v_and_b32 v{V_LANE}, 63, v0")
    A(f"v_readfirstlane_b32 s{S_WAVE}, v22")
    A(f"v_mul_u32_u24 v{V_W}, 10923, v0")
    A(f"v_lshrrev_b32 v{V_W}, 16, v{V_W}")
    A(f"v_lshlrev_b32 v19, {OGL+2}, v{V_W}")
    A(f"v_cmp_gt_u32 vcc, {NCH}, v{V_W}")
    A(f"s_lshr_b32 s3, s2, {OGL}")
    A(f"s_lshl_b32 s3, s3, {OGL+10}")
    A(f"s_and_b32 s4, s2, {OG-1}")
    A(f"s_lshl2_add_u32 s{S_OFFB}, s4, s3")
    A(f"v_cndmask_b32 v19, 0.5, v19, vcc")
    A("v_and_b32 v22, 15, v0")
    A(f"v_lshlrev_b32 v{V_LOFF}, 4, v22")
    A(f"v_lshlrev_b32 v22, 4, v{V_LANE}")
    A(f"v_lshlrev_b32 v21, 3, v{V_LANE}")
    A(f"s_lshr_b32 s9, s{S_WAVE}, 1")
    A("s_lshl_b32 s5, s9, 12")
    A(f"s_movk_i32 s4, {FR_B}")
    A(f"s_mul_i32 s8, s2, {BN*128}")
    A(f"s_lshl_b32 s9, s{S_WAVE}, 10")
    A("s_add_u32 s8, s8, s9")
    A("s_sub_u32 s8, s8, 8192")
    A(f"v_mul_u32_u24 v{V_CB}, {SS}, v{V_LANE}")
    A(f"v_add_u32 v{V_CB}, {SLOT}, v{V_CB}")
    A("v_cmp_gt_u32 vcc, 64, v0")
    A("v_and_b32 v23, 511, v0")
    A("v_lshlrev_b32 v23, 2, v23")
    A(f"v_cndmask_b32 v48, 0, v{V_CB}, vcc")
    A("v_cmp_gt_u32 vcc, 512, v0")
    for i in range(4):
        A(f"v_mov_b32 v{56+i}, 0x{DUMMY:x}")
    A("v_lshlrev_b32 v49, 4, v0")
    A(f"v_add_u32 v49, {SLOT}, v49")
    A("s_mov_b64 exec, vcc")
    A(f"ds_write_b32 v23, v48 offset:{CNT}")
    A("s_mov_b64 exec, -1")
    A("v_cmp_gt_u32 vcc, 576, v0")
    A("ds_write_b128 v49, v[56:59]")
    A("s_mov_b64 exec, vcc")
    A("ds_write_b128 v49, v[56:59] offset:16384")
    A("s_mov_b64 exec, -1")
    A("s_waitcnt lgkmcnt(0)")
    srd(SRD_A, WS_, WS_+1, 256*1024, OFF_OFF)
    A(f"buffer_load_dword v{V_OFF}, v19, {s4(SRD_A)}, s{S_OFFB} offen")
    srd(12, WS_, WS_+1, FR_SIZE, FR_OFF)
    srd(SRD_X, X_, X_+1, N*128)
    A(f"s_cmp_ge_u32 s{S_WAVE}, 8")
    A("s_cbranch_scc1 K2_LX")
    for sidx in range(4):
        A(f"buffer_load_dwordx4 {v(GA+4*sidx,4)}, v22, s[12:15], s5 offen offset:{1024*sidx}")
    A("s_branch K2_LJ")
    L("K2_LX")
    A(f"buffer_load_dwordx4 {v(V_XD,4)}, v22, {s4(SRD_X)}, s8 offen")
    L("K2_LJ")
    A(f"buffer_load_dwordx4 {v(V_B,4)}, v22, s[12:15], s4 offen")
    A(f"buffer_load_dwordx2 {v(V_SC,2)}, v21, s[12:15], s4 offen offset:{FR_S-FR_B}")
    srd(SRD_G, G_, G_+1, 129*128)
    srd(SRD_T, WS_, WS_+1, N, T_OFF)
    A(f"s_or_b32 s{SRD_T+1}, s{SRD_T+1}, 0x1000000")
    if PFE: prefetch()
    srd(SRD_REC, WS_, WS_+1, NCH*CS, REC_OFF)
    A(f"s_mov_b32 s{S_MODE}, 0")
    A(f"v_lshrrev_b32 v{V_PADDR}, 4, v0")
    A(f"v_mul_u32_u24 v{V_PADDR}, {RS_}, v{V_PADDR}")
    A(f"v_add_u32 v{V_PADDR}, v{V_PADDR}, v{V_LOFF}")
    A(f"v_mul_u32_u24 v23, 6, v{V_W}")
    A(f"v_sub_u32 v23, v0, v23")
    A(f"v_mul_u32_u24 v{V_SUB3}, 3, v23")
    A(f"v_mul_u32_u24 v22, {CS//16}, v{V_W}")
    A(f"v_add_u32 v22, v22, v23")
    A(f"v_mov_b32 v{V_FOUR}, 4")
    A(f"v_mov_b32 v51, 0.5")
    A(f"s_cmp_ge_u32 s{S_WAVE}, 8")
    A("s_cbranch_scc1 K2_W2")
    A(f"s_waitcnt vmcnt({6+PFE})")
    A("s_branch K2_W3")
    L("K2_W2")
    A(f"s_waitcnt vmcnt({3+PFE})")
    L("K2_W3")
    stamp(1)
    A(f"v_and_b32 v23, 0xffff, v{V_OFF}")
    A(f"v_lshrrev_b32 v{V_RADDR}, 16, v{V_OFF}")
    A(f"v_sub_u32 v23, v23, v{V_SUB3} clamp")
    A(f"v_add_lshl_u32 v{V_RADDR}, v{V_RADDR}, v22, 4")
    for r in range(3):
        A(f"v_cmp_lt_u32 {s2(S_M+6*r)}, {18*r}, v23")
    for r in range(3):
        A(f"v_cndmask_b32 v{V_A+r}, v51, v{V_RADDR}, {s2(S_M+6*r)}")
        A(f"buffer_load_dwordx4 {v(V_R+4*r,4)}, v{V_A+r}, {s4(SRD_REC)}, 0 offen offset:{96*r}")
    if PFL: prefetch()
    if OT:
        srd(12, OUT_, OUT_+1, N*128)
        A(f"s_mul_i32 s5, s2, {BN*128}")
        A("buffer_load_dword v127, off, s[12:15], s5")
    for r in range(3):
        for j in (1, 2):
            A(f"v_cmp_lt_u32 {s2(S_M+6*r+2*j)}, {18*r+j}, v23")
    A(f"s_cmp_lt_u32 s{S_WAVE}, 8")
    A("s_cbranch_scc1 K2_GEMM")
    A(f"v_lshrrev_b32 v56, 3, v0")
    A(f"v_mul_u32_u24 v56, 144, v56")
    A(f"v_and_b32 v57, 7, v0")
    A(f"v_lshl_add_u32 v56, v57, 4, v56")
    A(f"s_waitcnt vmcnt({5+NP+PFE})")
    A(f"ds_write_b128 v56, {v(V_XD,4)} offset:{XT-64*144}")
    A("s_waitcnt lgkmcnt(0)")
    A("s_barrier")
    A("s_branch K2_RANK")
    L("K2_GEMM")
    A(f"s_and_b32 s8, s{S_WAVE}, 1")
    A("s_lshl_b32 s8, s8, 5")
    A(f"v_and_b32 v56, 31, v{V_LANE}")
    A(f"v_lshrrev_b32 v57, 5, v{V_LANE}")
    A(f"v_add_u32 v56, s8, v56")
    A(f"v_mul_u32_u24 v58, 144, v56")
    A(f"v_lshl_add_u32 v58, v57, 4, v58")
    A(f"s_lshr_b32 s4, s{S_WAVE}, 2")
    A(f"s_bfe_u32 s5, s{S_WAVE}, 0x10001")
    A(f"v_mul_u32_u24 v59, {RS_}, v56")
    A("v_lshl_add_u32 v59, v57, 6, v59")
    A("s_lshl_b32 s9, s5, 7")
    A("v_add_u32 v59, s9, v59")
    A(f"v_cmp_gt_u32 s[10:11], {BN}, v56")
    A("s_barrier")
    for sidx in range(4):
        A(f"ds_read_b128 {v(V_X+4*sidx,4)}, v58 offset:{XT+32*sidx}")
    A(f"s_waitcnt vmcnt({5+NP+PFE})")
    for sidx in range(4):
        A(f"s_waitcnt lgkmcnt({3-sidx})")
        c = "0" if sidx == 0 else v(GD, 16)
        A(f"v_mfma_f32_32x32x16_bf16 {v(GD,16)}, {v(GA+4*sidx,4)}, {v(V_X+4*sidx,4)}, {c}")
    A(f"s_mov_b32 s8, 0x{NEGL:x}")
    A(f"s_mov_b32 s9, 0x{f32bits(3.3):x}")
    A("s_nop 7")
    A("s_nop 3")
    A("s_cmp_lg_u32 s4, 0")
    A("s_mov_b64 exec, s[10:11]")
    A("s_cbranch_scc1 K2_GU")
    for i in range(16):
        A(f"v_mul_f32 v{GD+i}, s8, v{GD+i}")
    for kk in range(4):
        A(f"ds_write_b128 v59, {v(GD+4*kk,4)} offset:{XAL+16*kk}")
    for i in range(16):
        A(f"v_sub_f32 v{GA+i}, {KLOG}, v{GD+i}")
    A(f"v_max_f32 v60, v{GD}, v{GD+1}")
    for i in range(7):
        A(f"v_max3_f32 v60, v60, v{GD+2+2*i}, v{GD+3+2*i}")
    A("v_cmp_ge_f32 vcc, s9, v60")
    for i in range(16):
        A(f"v_exp_f32 v{GA+i}, v{GA+i}")
    A(f"v_cndmask_b32 v{GA}, -1, v{GA}, vcc")
    for kk in range(4):
        A(f"ds_write_b128 v59, {v(GA+4*kk,4)} offset:{IA+16*kk}")
    A("s_branch K2_GJ")
    L("K2_GU")
    for kk in range(4):
        A(f"ds_write_b128 v59, {v(GD+4*kk,4)} offset:{AGG+16*kk}")
    L("K2_GJ")
    A("s_mov_b64 exec, -1")
    L("K2_RANK")
    def nodebyte(dst, src, j):
        if j == 0: A(f"v_and_b32 v{dst}, 0xff, v{src}")
        else: A(f"v_bfe_u32 v{dst}, v{src}, {8*j}, 8")
    A(f"s_mov_b32 s8, {SLOT+25592}")
    for r in range(2):
        A(f"s_waitcnt vmcnt({2-r+NP})")
        for j in range(3):
            nodebyte(V_LA+3*r+j, V_R+4*r+3, j)
        for j in range(3):
            A(f"s_mov_b64 exec, {s2(S_M+6*r+2*j)}")
            A(f"ds_add_rtn_u32 v{V_LA+3*r+j}, v{V_LA+3*r+j}, v{V_FOUR} offset:{CNT}")
        A("s_mov_b64 exec, -1")
    for k in range(6):
        r, j = divmod(k, 3)
        A("s_waitcnt lgkmcnt(5)")
        A(f"s_mov_b64 exec, {s2(S_M+6*r+2*j)}")
        A(f"v_min_u32 v{V_LA+k}, s8, v{V_LA+k}")
        A(f"ds_write_b32 v{V_LA+k}, v{V_R+4*r+j}")
    A("s_mov_b64 exec, -1")
    A(f"s_waitcnt vmcnt({NP})")
    A(f"v_readfirstlane_b32 s{S_ESC}, v{V_SC}")
    A(f"v_readfirstlane_b32 s{S_THR}, v{V_SC+1}")
    A(f"s_cmp_eq_u64 {s2(S_M+12)}, 0")
    A("s_cbranch_scc1 K2_NOR3")
    for j in range(3):
        nodebyte(V_LA+6+j, V_R+11, j)
    for j in range(3):
        A(f"s_mov_b64 exec, {s2(S_M+12+2*j)}")
        A(f"ds_add_rtn_u32 v{V_LA+6+j}, v{V_LA+6+j}, v{V_FOUR} offset:{CNT}")
    A("s_waitcnt lgkmcnt(0)")
    for j in range(3):
        A(f"s_mov_b64 exec, {s2(S_M+12+2*j)}")
        A(f"v_min_u32 v{V_LA+6+j}, s8, v{V_LA+6+j}")
        A(f"ds_write_b32 v{V_LA+6+j}, v{V_R+8+j}")
    A("s_mov_b64 exec, -1")
    A("v_cmpx_lt_u32 vcc, 54, v23")
    A("v_mov_b32 v56, 0")
    A("v_mov_b32 v57, 0x100000")
    A(f"ds_write_b32 v56, v57 offset:{CNT+252}")
    A("s_mov_b64 exec, -1")
    L("K2_NOR3")
    A(f"v_lshlrev_b32 v52, 2, v{V_LANE}")
    A("s_waitcnt lgkmcnt(0)")
    stamp(2)
    A("s_barrier")
    stamp(3)
    A(f"ds_read_b32 v53, v52 offset:{CNT}")
    A("s_waitcnt lgkmcnt(0)")
    A(f"v_sub_u32 v53, v53, v{V_CB}")
    A("v_add_u32 v56, 12, v53")
    A("v_lshrrev_b32 v56, 4, v56")
    A(f"v_mov_b32 v{V_END}, v56")
    scan64(V_END)
    A("v_cmp_lt_u32 vcc, 32, v56")
    A(f"v_cmp_ne_u32 {s2(S_NE)}, 0, v56")
    A(f"v_readlane_b32 s12, v{V_END}, 63")
    A(f"v_sub_u32 v{V_BQ}, v{V_END}, v56")
    A(f"v_lshlrev_b32 v57, 4, v{V_BQ}")
    A(f"v_sub_u32 v{V_DEL}, v{V_CB}, v57")
    A("s_cbranch_vccnz K2_GENERAL")
    A(f"s_cmp_gt_u32 s12, {CAP//4}")
    A("s_cbranch_scc1 K2_GENERAL")
    L("K2_SETUP")
    IX = 24
    AR = 32
    PR = 48
    DS = 56
    VIA, VIAN, VN, VD, VACC, VS, VH, VU, VT = 72, 76, 80, 84, 88, 92, 96, 100, 104
    VRA, VRI, VINC, VDST, VG4, VNX, VREC, VP4, VLQ, VDL = 108, 109, 110, 111, 112, 113, 114, 115, 116, 117
    SL = 118
    VPREV, VPN = 124, 125
    S_PAR = 9
    A(f"s_mul_i32 s13, s12, s{S_WAVE}")
    A(f"s_add_u32 s14, s13, s12")
    A(f"s_lshr_b32 s{S_Q}, s13, 4")
    A(f"s_lshr_b32 s{S_Q1}, s14, 4")
    A(f"v_cmp_lt_u32 vcc, s{S_Q}, v{V_END}")
    A(f"s_mov_b32 s4, 0x7fffffff")
    A(f"v_writelane_b32 v{V_BQ}, s4, 63")
    A(f"s_lshl_b32 s15, s{S_WAVE}, 2")
    A(f"v_mov_b32 v{VU}, s15")
    A(f"v_mov_b32 v{VU+1}, 0xffff")
    A(f"ds_write_b32 v{VU}, v{VU+1} offset:{SPN}")
    A(f"s_cmp_eq_u32 s{S_Q}, s{S_Q1}")
    A("s_cbranch_scc1 K2_MAINDONE")
    A(f"s_and_b64 {s2(S_NE)}, {s2(S_NE)}, vcc")
    A(f"s_ff1_i32_b64 s{S_CNODE}, {s2(S_NE)}")
    A(f"s_bitset0_b64 {s2(S_NE)}, s{S_CNODE}")
    A(f"s_mov_b64 {s2(S_NE2)}, {s2(S_NE)}")
    A(f"s_bitset1_b64 {s2(S_NE2)}, 63")
    A(f"s_ff1_i32_b64 s{S_NN}, {s2(S_NE2)}")
    A(f"v_readlane_b32 s{S_DEL}, v{V_DEL}, s{S_CNODE}")
    A(f"v_readlane_b32 s{S_NST}, v{V_BQ}, s{S_NN}")
    A(f"v_lshrrev_b32 v{VLQ}, 2, v{V_LANE}")
    A(f"s_lshl_b32 s4, s{S_Q}, 4")
    A(f"v_lshl_add_u32 v{VP4}, v{V_LANE}, 2, s4")
    A(f"s_mov_b32 s{S_QR}, s{S_Q}")
    mapn = [0]
    def mapread():
        t = mapn[0]; mapn[0] += 1
        A(f"v_add_u32 v{VDL}, s{S_DEL}, v{VP4}")
        A(f"s_sub_u32 s4, s{S_NST}, s{S_QR}")
        A("s_cmp_ge_u32 s4, 16")
        A(f"s_cbranch_scc1 K2_MD{t}")
        L(f"K2_ML{t}")
        A(f"v_readlane_b32 s{S_DEL}, v{V_DEL}, s{S_NN}")
        A(f"s_bitset0_b64 {s2(S_NE2)}, s{S_NN}")
        A(f"s_ff1_i32_b64 s{S_NN}, {s2(S_NE2)}")
        A(f"v_readlane_b32 s{S_NST}, v{V_BQ}, s{S_NN}")
        A(f"v_cmpx_le_u32 vcc, s4, v{VLQ}")
        A(f"v_add_u32 v{VDL}, s{S_DEL}, v{VP4}")
        A("s_mov_b64 exec, -1")
        A(f"s_sub_u32 s4, s{S_NST}, s{S_QR}")
        A("s_cmp_lt_u32 s4, 16")
        A(f"s_cbranch_scc1 K2_ML{t}")
        L(f"K2_MD{t}")
        A(f"ds_read_b32 v{VREC}, v{VDL}")
        A(f"s_add_u32 s{S_QR}, s{S_QR}, 16")
    def powers():
        A(f"ds_write_b32 v{VP4}, v{VREC} offset:{SI}")
        A(f"v_and_b32 v{VT+1}, 0xffff0000, v{VREC}")
        A(f"v_mul_f32 v{VT+1}, s{S_ESC}, v{VT+1}")
        A(f"v_mul_f32 v{VT+2}, v{VT+1}, v{VT+1}")
        A(f"v_cmp_ge_f32 vcc, s{S_THR}, v{VT+2}")
        A(f"v_cvt_pkrtz_f16_f32 v{VT}, v{VT+1}, v{VT+2}")
        A(f"v_lshlrev_b32 v{VDL}, 2, v{VP4}")
        A(f"v_add_u32 v{VP4}, 0x100, v{VP4}")
        A(f"v_cndmask_b32 v{VT}, -1, v{VT}, vcc")
        for j in range(3):
            A(f"v_pk_mul_f16 v{VT+j+1}, v{VT+j}, v{VT} op_sel:[0,1] op_sel_hi:[1,1]")
        A(f"ds_write_b128 v{VDL}, {v(VT,4)} offset:{PW}")
    mapread()
    A(f"v_lshrrev_b32 v{VG4}, 4, v{V_LANE}")
    A(f"v_and_b32 v{VT}, 3, v{V_LANE}")
    A(f"v_cmp_eq_u32 vcc, v{VT}, v{VG4}")
    A(f"v_mov_b32 v{VT+1}, 512")
    A(f"v_bfe_u32 v{VT}, v{V_LANE}, 2, 2")
    A(f"v_cndmask_b32 v{VINC}, 0, v{VT+1}, vcc")
    A(f"s_lshl_b32 s4, s{S_Q}, 6")
    A(f"s_add_u32 s4, s4, {PW}")
    A(f"v_lshl_add_u32 v{VT}, v{VT}, 4, s4")
    A(f"v_mov_b32 v{VT+1}, {ZR}")
    A(f"v_cndmask_b32 v{VRA}, v{VT+1}, v{VT}, vcc")
    A(f"v_lshlrev_b32 v{VG4}, 2, v{VG4}")
    A(f"s_lshl_b32 s4, s{S_Q}, 4")
    A(f"s_add_u32 s4, s4, {SI}")
    A(f"v_add_u32 v{VRI}, s4, v{VG4}")
    for k in range(4):
        A(f"v_mov_b32 v{IX+2*k+1}, v{V_LOFF}")
    A(f"s_mov_b32 s{S_PAR}, 0")
    A(f"v_readlane_b32 s{S_END}, v{V_END}, s{S_CNODE}")
    A(f"v_readlane_b32 s5, v{V_BQ}, s{S_CNODE}")
    A(f"s_mul_i32 s4, s{S_CNODE}, {RS_}")
    A(f"v_add_u32 v{VNX}, s4, v{V_LOFF}")
    A(f"v_add_u32 v{VDST}, v{VNX}, v{VG4}")
    A(f"v_mov_b32 v{VPN}, v{VDST}")
    A(f"s_cmp_lt_u32 s5, s{S_Q}")
    A("s_cbranch_scc0 K2_NOSHARE")
    A(f"s_lshl_b32 s4, s{S_WAVE}, 8")
    A(f"s_add_u32 s4, s4, {SP}")
    A(f"v_add3_u32 v{VDST}, v{V_LOFF}, v{VG4}, s4")
    A(f"v_mov_b32 v{VU+1}, s{S_CNODE}")
    A(f"v_mov_b32 v{VPN}, {ZR}")
    A(f"ds_write_b32 v{VU}, v{VU+1} offset:{SPN}")
    L("K2_NOSHARE")
    A(f"ds_read_b32 v{VPREV}, v{VPN}")
    A(f"ds_read_b128 {v(VIA,4)}, v{VNX} offset:{IA}")
    A(f"s_min_u32 s{S_REM}, s{S_END}, s{S_Q1}")
    A(f"s_sub_u32 s{S_REM}, s{S_REM}, s{S_Q}")
    A(f"s_mov_b32 s{S_RUN}, s{S_Q}")
    A(f"s_mov_b32 s{S_BIG}, 0x{f32bits(2.0**118):x}")
    A("s_waitcnt lgkmcnt(2)")
    A(f"ds_write_b32 v{VP4}, v{VREC} offset:{SI}")
    for k in range(4):
        A(f"ds_read_u16 v{IX+2*k}, v{VRI} offset:{16*k}")
    n0 = len(out)
    powers()
    del out[n0]
    tail = out[n0:]; del out[n0:]
    out.extend(tail[:5])
    for k in range(3):
        A(f"s_waitcnt lgkmcnt({3-k})")
        A(f"buffer_load_dwordx4 {v(DS+4*k,4)}, {v(IX+2*k,2)}, {s4(SRD_T)}, 0 idxen offen")
    out.extend(tail[5:])
    for k in range(3):
        A(f"ds_read_b128 {v(AR+4*k,4)}, v{VRA} offset:{64*k}")
    for k in range(4, 6):
        A(f"ds_read_u16 v{IX+2*(k%4)}, v{VRI} offset:{16*k}")
    mapread()
    for i in range(4):
        A(f"v_mov_b32 v{VN+i}, 0")
        A(f"v_mov_b32 v{VD+i}, 1.0")
        A(f"v_mov_b32 v{VACC+i}, 0")
    A("s_waitcnt lgkmcnt(5)")
    A(f"v_mfma_f32_16x16x32_f16 {v(PR,4)}, {v(AR,4)}, {v(V_B,4)}, 1.0")
    A("s_waitcnt lgkmcnt(0)")
    stamp(4)
    PRIO = not flag("noprio")
    if PRIO: A("s_setprio 3")
    L("K2_LOOP")
    for k in range(8):
        d3 = DS + 4*((k+3) % 4); d0 = DS + 4*(k % 4)
        pc = PR + 4*(k % 2); pn = PR + 4*((k+1) % 2)
        A(f"ds_read_u16 v{IX+2*((k+2)%4)}, v{VRI} offset:{16*(k+6)}")
        A(f"ds_read_b128 {v(AR+4*((k+3)%4),4)}, v{VRA} offset:{64*(k+3)}")
        A("s_waitcnt lgkmcnt(4)")
        A(f"buffer_load_dwordx4 {v(d3,4)}, {v(IX+2*((k+3)%4),2)}, {s4(SRD_T)}, 0 idxen offen")
        A(f"v_mfma_f32_16x16x32_f16 {v(pn,4)}, {v(AR+4*((k+1)%4),4)}, {v(V_B,4)}, 1.0")
        A("s_waitcnt vmcnt(3)")
        A(f"v_lshlrev_b64 {v(VH,2)}, 16, {v(d0,2)}")
        A(f"v_lshlrev_b64 {v(VH+2,2)}, 16, {v(d0+2,2)}")
        for j in (0, 2):
            A(f"v_pk_fma_f32 {v(VS+j,2)}, {v(d0+j,2)}, {v(pc+j,2)}, {v(VIA+j,2)}")
        for j in (0, 2):
            A(f"v_pk_mul_f32 {v(VU+j,2)}, {v(VH+j,2)}, {v(VD+j,2)}")
        for j in (0, 2):
            A(f"v_pk_fma_f32 {v(VN+j,2)}, {v(VN+j,2)}, {v(VS+j,2)}, {v(VU+j,2)}")
            A(f"v_pk_mul_f32 {v(VD+j,2)}, {v(VD+j,2)}, {v(VS+j,2)}")
        A(f"s_cmp_eq_u32 s{S_REM}, {k+1}")
        A(f"s_cbranch_scc1 K2_FL{k}")
        L(f"K2_BK{k}")
    A(f"v_add_u32 v{VRI}, 128, v{VRI}")
    A(f"v_add_u32 v{VRA}, v{VINC}, v{VRA}")
    A(f"s_add_u32 s{S_Q}, s{S_Q}, 8")
    A(f"s_sub_u32 s{S_REM}, s{S_REM}, 8")
    A(f"s_xor_b32 s{S_PAR}, s{S_PAR}, 1")
    A("s_cbranch_scc0 K2_NOPW")
    powers()
    mapread()
    L("K2_NOPW")
    if PRIO:
        TH = [int(x) for x in opt("prth", "24,16,8").split(",")]
        A(f"s_sub_u32 s3, s{S_Q1}, s{S_Q}")
        A(f"s_cmp_gt_i32 s3, {TH[0]}")
        A("s_cbranch_scc1 K2_PRX")
        A("s_setprio 2")
        A(f"s_cmp_gt_i32 s3, {TH[1]}")
        A("s_cbranch_scc1 K2_PRX")
        A("s_setprio 1")
        A(f"s_cmp_gt_i32 s3, {TH[2]}")
        A("s_cbranch_scc1 K2_PRX")
        A("s_setprio 0")
        L("K2_PRX")
    A(f"s_sub_u32 s3, s{S_Q}, s{S_RUN}")
    A("s_cmp_lt_u32 s3, 16")
    A("s_cbranch_scc1 K2_LOOP")
    def resolve(tag):
        for j in (0, 2):
            A(f"v_pk_mul_f32 {v(VN+j,2)}, {v(VN+j,2)}, {v(VIA+j,2)}")
        A(f"v_pk_add_f32 {v(VH,2)}, {v(VD,2)}, {v(VD+2,2)}")
        for j in (0, 2):
            A(f"v_pk_mul_f32 {v(VU+j,2)}, {v(VN+j,2)}, {v(VT+j,2)}")
        A(f"v_pk_fma_f32 {v(VH,2)}, {v(VU,2)}, 0, {v(VH,2)} op_sel_hi:[1,0,1]")
        A(f"v_pk_fma_f32 {v(VH,2)}, {v(VU+2,2)}, 0, {v(VH,2)} op_sel_hi:[1,0,1]")
        A(f"v_add_f32 v{VH}, v{VH}, v{VH+1}")
        A(f"v_cmp_ngt_f32 vcc, s{S_BIG}, v{VH}")
        A(f"s_cbranch_vccz K2_FOK{tag}")
        A(f"s_call_b64 {s2(S_RET2)}, K2_SLOW")
        L(f"K2_FOK{tag}")
        for j in (0, 2):
            A(f"v_pk_add_f32 {v(VACC+j,2)}, {v(VACC+j,2)}, {v(VU+j,2)}")
    for i in range(4):
        A(f"v_rcp_f32 v{VT+i}, v{VD+i}")
    A(f"s_sub_u32 s{S_QB}, s{S_Q}, 1")
    resolve("R")
    for i in range(4):
        A(f"v_mov_b32 v{VN+i}, 0")
        A(f"v_mov_b32 v{VD+i}, 1.0")
    A(f"s_mov_b32 s{S_RUN}, s{S_Q}")
    A("s_branch K2_LOOP")
    for k in range(8):
        L(f"K2_FL{k}")
        A(f"s_call_b64 {s2(S_RET)}, K2_FLUSH")
        A(f"s_cbranch_scc0 K2_BK{k}")
        A(f"s_branch K2_MAINDONE")
    L("K2_FLUSH")
    for i in range(4):
        A(f"v_rcp_f32 v{VT+i}, v{VD+i}")
    A(f"s_ff1_i32_b64 s{S_NODE}, {s2(S_NE)}")
    A(f"s_max_i32 s{S_NODE}, s{S_NODE}, 0")
    A(f"s_bitset0_b64 {s2(S_NE)}, s{S_NODE}")
    A(f"s_mul_i32 s8, s{S_NODE}, {RS_}")
    A(f"v_add_u32 v{VNX}, s8, v{V_LOFF}")
    A(f"ds_read_b128 {v(VIAN,4)}, v{VNX} offset:{IA}")
    A(f"v_add_u32 v{VNX}, v{VNX}, v{VG4}")
    A(f"ds_read_b32 v{VPN}, v{VNX}")
    A(f"v_readlane_b32 s{S_END}, v{V_END}, s{S_NODE}")
    A(f"s_add_u32 s{S_QB}, s{S_Q}, s{S_REM}")
    A(f"s_sub_u32 s{S_QB}, s{S_QB}, 1")
    resolve("F")
    A(f"v_mov_b32 v{VN}, 0")
    A(f"v_mov_b32 v{VN+1}, 0")
    A(f"v_permlane32_swap_b32 v{VACC}, v{VACC+2}")
    A(f"v_permlane32_swap_b32 v{VACC+1}, v{VACC+3}")
    A(f"v_mov_b32 v{VN+2}, 0")
    A(f"v_pk_add_f32 {v(VU,2)}, {v(VACC,2)}, {v(VACC+2,2)}")
    A(f"v_mov_b32 v{VN+3}, 0")
    A(f"v_mov_b32 v{VD}, 1.0")
    A(f"v_permlane16_swap_b32 v{VU}, v{VU+1}")
    A(f"v_mov_b32 v{VD+1}, 1.0")
    A(f"v_add_f32 v{VU}, v{VU}, v{VU+1}")
    A(f"v_add_f32 v{VU}, v{VU}, v{VPREV}")
    A(f"ds_write_b32 v{VDST}, v{VU}")
    A(f"s_add_u32 s{S_RUN}, s{S_QB}, 1")
    A(f"s_min_u32 s{S_REM}, s{S_END}, s{S_Q1}")
    A(f"s_sub_u32 s{S_REM}, s{S_REM}, s{S_Q}")
    A(f"s_mov_b32 s{S_CNODE}, s{S_NODE}")
    A(f"v_mov_b32 v{VDST}, v{VNX}")
    A(f"v_mov_b32 v{VD+2}, 1.0")
    A(f"v_mov_b32 v{VD+3}, 1.0")
    for i in range(4):
        A(f"v_mov_b32 v{VACC+i}, 0")
    A("s_waitcnt lgkmcnt(1)")
    for i in range(4):
        A(f"v_mov_b32 v{VIA+i}, v{VIAN+i}")
    A(f"v_mov_b32 v{VPREV}, v{VPN}")
    A(f"s_cmp_eq_u32 s{S_RUN}, s{S_Q1}")
    A(f"s_setpc_b64 {s2(S_RET)}")
    L("K2_SLOW")
    if DBG: A("s_add_u32 s93, s93, 1")
    for i in range(4):
        A(f"v_mov_b32 v{VU+i}, 0")
    A(f"s_mov_b32 s{S_I}, s{S_RUN}")
    A(f"s_mov_b32 s15, 0x{NEGL:x}")
    A(f"v_lshrrev_b32 v{SL+4}, 1, v{V_LOFF}")
    L("K2_SLOWL")
    A(f"s_lshl_b32 s12, s{S_I}, 4")
    A(f"s_add_u32 s12, s12, {SI}")
    A(f"v_add_u32 v{SL}, s12, v{VG4}")
    A(f"ds_read_b32 v{SL+2}, v{SL}")
    A("s_movk_i32 s12, 0x4000")
    A(f"buffer_load_dwordx2 {v(VN,2)}, v{SL+4}, {s4(SRD_G)}, s12 offen")
    A(f"v_mov_b32 v{SL+1}, v{V_LOFF}")
    A("s_waitcnt lgkmcnt(0)")
    A(f"v_and_b32 v{SL}, 0xffff, v{SL+2}")
    A(f"buffer_load_dwordx4 {v(VT,4)}, {v(SL,2)}, {s4(SRD_T)}, 0 idxen offen")
    A(f"v_and_b32 v{SL+3}, 0xffff0000, v{SL+2}")
    A(f"v_lshlrev_b32 v{SL+5}, 7, v{SL}")
    A("s_waitcnt vmcnt(0)")
    A(f"v_lshlrev_b32 v{VS}, 16, v{VN}")
    A(f"v_and_b32 v{VS+1}, 0xffff0000, v{VN}")
    A(f"v_lshlrev_b32 v{VS+2}, 16, v{VN+1}")
    A(f"v_and_b32 v{VS+3}, 0xffff0000, v{VN+1}")
    for i in range(4):
        A(f"v_mul_f32 v{VS+i}, v{VS+i}, v{SL+3}")
    A(f"v_lshlrev_b64 {v(VH,2)}, 16, {v(VT,2)}")
    A(f"v_lshlrev_b64 {v(VH+2,2)}, 16, {v(VT+2,2)}")
    A("s_mov_b32 s13, 0")
    L("K2_SLOWK")
    A(f"buffer_load_dwordx2 {v(SL+2,2)}, v{SL+5}, {s4(SRD_X)}, s13 offen")
    A("s_lshl_b32 s14, s13, 6")
    A("s_add_u32 s14, s14, 0x2000")
    for j in range(4):
        A(f"buffer_load_dwordx2 {v(VN+2*j,2)}, v{SL+4}, {s4(SRD_G)}, s14 offen offset:{128*j}")
    A("s_waitcnt vmcnt(0)")
    for j in range(4):
        src = SL + 2 + (j >> 1)
        if j & 1: A(f"v_and_b32 v{VT}, 0xffff0000, v{src}")
        else: A(f"v_lshlrev_b32 v{VT}, 16, v{src}")
        for i in range(4):
            w = VN + 2*j + (i >> 1)
            if i & 1: A(f"v_and_b32 v{VT+1}, 0xffff0000, v{w}")
            else: A(f"v_lshlrev_b32 v{VT+1}, 16, v{w}")
            A(f"v_fma_f32 v{VS+i}, v{VT}, v{VT+1}, v{VS+i}")
    A("s_add_u32 s13, s13, 8")
    A("s_cmp_lt_u32 s13, 128")
    A("s_cbranch_scc1 K2_SLOWK")
    A(f"s_mul_i32 s12, s{S_CNODE}, {RS_}")
    A(f"v_add_u32 v{SL+2}, s12, v{V_LOFF}")
    A(f"ds_read_b128 {v(VT,4)}, v{SL+2} offset:{XAL}")
    A("s_waitcnt lgkmcnt(0)")
    for i in range(4):
        A(f"v_fma_f32 v{VS+i}, v{VS+i}, s15, v{VT+i}")
    for i in range(4):
        A(f"v_exp_f32 v{VS+i}, v{VS+i}")
    A("s_nop 0")
    for i in range(4):
        A(f"v_add_f32 v{VS+i}, 1.0, v{VS+i}")
    for i in range(4):
        A(f"v_rcp_f32 v{VS+i}, v{VS+i}")
    A("s_nop 0")
    for i in range(4):
        A(f"v_fma_f32 v{VU+i}, v{VH+i}, v{VS+i}, v{VU+i}")
    A(f"s_add_u32 s{S_I}, s{S_I}, 1")
    A(f"s_cmp_le_u32 s{S_I}, s{S_QB}")
    A("s_cbranch_scc1 K2_SLOWL")
    A(f"s_setpc_b64 {s2(S_RET2)}")
    L("K2_GENERAL")
    A(f"s_mov_b32 s{S_MODE}, 1")
    A(f"s_mov_b32 s{S_W}, -1")
    A("s_branch K2_NEXTWIN")
    L("K2_MAINDONE")
    if PRIO: A("s_setprio 0")
    A("s_waitcnt lgkmcnt(0)")
    stamp(5)
    A("s_barrier")
    stamp(6)
    A(f"s_cmp_gt_u32 s{S_WAVE}, 12")
    A("s_cbranch_scc1 K2_NOACC")
    A(f"ds_read_b128 v[24:27], v{V_PADDR} offset:{AGG}")
    A(f"v_lshrrev_b32 v28, 2, v{V_LOFF}")
    A(f"ds_read_b32 v29, v28 offset:{SPN}")
    A(f"v_lshrrev_b32 v31, 4, v0")
    A("s_waitcnt lgkmcnt(0)")
    A("v_lshrrev_b32 v30, 2, v29")
    A(f"v_cmp_eq_u32 vcc, s{S_WAVE}, v30")
    A("s_and_b32 s8, vcc_lo, 0xffff")
    A("s_cbranch_scc0 K2_NOSP")
    L("K2_SPL")
    A("s_ff1_i32_b32 s9, s8")
    A("s_bitset0_b32 s8, s9")
    A("v_readlane_b32 s10, v29, s9")
    A("s_lshl_b32 s9, s9, 8")
    A(f"s_add_u32 s9, s9, {SP}")
    A(f"v_add_u32 v30, s9, v{V_LOFF}")
    A(f"ds_read_b128 v[32:35], v30")
    A("v_cmp_eq_u32 vcc, s10, v31")
    A("s_waitcnt lgkmcnt(0)")
    A("s_mov_b64 exec, vcc")
    A(f"v_pk_add_f32 v[24:25], v[24:25], v[32:33]")
    A(f"v_pk_add_f32 v[26:27], v[26:27], v[34:35]")
    A("s_mov_b64 exec, -1")
    A("s_cmp_lg_u32 s8, 0")
    A("s_cbranch_scc1 K2_SPL")
    L("K2_NOSP")
    A(f"s_cmp_eq_u32 s{S_MODE}, 0")
    A("s_cbranch_scc1 K2_EPI")
    A(f"ds_write_b128 v{V_PADDR}, v[24:27] offset:{AGG}")
    A("s_waitcnt lgkmcnt(0)")
    L("K2_NOACC")
    A(f"s_cmp_eq_u32 s{S_MODE}, 0")
    A("s_cbranch_scc1 K2_END")
    L("K2_NEXTWIN")
    A(f"s_add_u32 s{S_W}, s{S_W}, 1")
    A(f"s_cmp_ge_u32 s{S_W}, {2*NCH}")
    A("s_cbranch_scc1 K2_LASTWIN")
    A(f"s_lshr_b32 s9, s{S_W}, 1")
    A(f"s_and_b32 s10, s{S_W}, 1")
    A(f"s_lshl_b32 s4, s9, {OGL+2}")
    A("v_mov_b32 v22, s4")
    A(f"buffer_load_dword v{V_OFF}, v22, {s4(SRD_A)}, s{S_OFFB} offen")
    A("s_mul_i32 s11, s10, 3072")
    A("s_lshl_b32 s10, s10, 10")
    A("s_waitcnt vmcnt(0)")
    A(f"v_readfirstlane_b32 s4, v{V_OFF}")
    A("s_and_b32 s5, s4, 0xffff")
    A("s_cmp_le_u32 s5, s11")
    A("s_cbranch_scc1 K2_NEXTWIN")
    A("s_sub_u32 s5, s5, s11")
    A("s_lshr_b32 s4, s4, 16")
    A(f"s_mul_i32 s8, s9, {CS//16}")
    A("s_add_u32 s4, s4, s8")
    A("s_add_u32 s4, s4, s10")
    A(f"v_add_lshl_u32 v{V_RADDR}, s4, v0, 4")
    A("v_mul_u32_u24 v22, 3, v0")
    A("v_sub_u32 v23, s5, v22 clamp")
    A("v_mov_b32 v51, 0.5")
    for j in range(3):
        A(f"v_cmp_lt_u32 {s2(S_M+2*j)}, {j}, v23")
    A(f"v_cndmask_b32 v{V_A}, v51, v{V_RADDR}, {s2(S_M)}")
    A(f"buffer_load_dwordx4 {v(V_R,4)}, v{V_A}, {s4(SRD_REC)}, 0 offen")
    A("s_barrier")
    A(f"v_lshlrev_b32 v52, 2, v{V_LANE}")
    A("v_mov_b32 v53, 0")
    A(f"ds_write_b32 v52, v53 offset:{CNT}")
    A("s_waitcnt vmcnt(0) lgkmcnt(0)")
    A("s_barrier")
    for k in range(3):
        r, j = divmod(k, 3)
        nodebyte(V_LA+k, V_R+4*r+3, j)
    for k in range(3):
        A(f"s_mov_b64 exec, {s2(S_M+2*k)}")
        A(f"ds_add_rtn_u32 v{56+k}, v{V_LA+k}, v{V_FOUR} offset:{CNT}")
    A("s_mov_b64 exec, -1")
    A("s_waitcnt lgkmcnt(0)")
    A("s_barrier")
    A(f"ds_read_b32 v53, v52 offset:{CNT}")
    A("s_waitcnt lgkmcnt(0)")
    A("v_add_u32 v54, 12, v53")
    A("v_lshrrev_b32 v54, 4, v54")
    A(f"v_mov_b32 v{V_END}, v54")
    scan64(V_END)
    A(f"v_cmp_ne_u32 s[10:11], 0, v54")
    A(f"v_mov_b32 v{V_DEL}, {SLOT}")
    A(f"v_readlane_b32 s12, v{V_END}, 63")
    A(f"v_sub_u32 v{V_BQ}, v{V_END}, v54")
    A(f"v_lshl_add_u32 v55, v{V_BQ}, 4, v{V_DEL}")
    for k in range(3):
        A(f"ds_bpermute_b32 v{64+k}, v{V_LA+k}, v55")
    A(f"v_mov_b32 v62, 0x{DUMMY:x}")
    A("v_add_u32 v63, v55, v53")
    A("v_lshlrev_b32 v54, 4, v54")
    A("v_sub_u32 v54, v54, v53")
    A("s_waitcnt lgkmcnt(0)")
    for k in range(3):
        r, j = divmod(k, 3)
        A(f"s_mov_b64 exec, {s2(S_M+2*k)}")
        A(f"v_add_u32 v{64+k}, v{64+k}, v{56+k}")
        A(f"ds_write_b32 v{64+k}, v{V_R+4*r+j}")
    A("s_mov_b64 exec, -1")
    for j in range(3):
        A(f"v_cmpx_lt_u32 vcc, {4*j}, v54")
        A(f"ds_write_b32 v63, v62 offset:{4*j}")
    A("s_mov_b64 exec, -1")
    A(f"s_mov_b64 {s2(S_NE)}, s[10:11]")
    A("s_waitcnt lgkmcnt(0)")
    A("s_barrier")
    A("s_branch K2_SETUP")
    L("K2_LASTWIN")
    A(f"s_cmp_gt_u32 s{S_WAVE}, 12")
    A("s_cbranch_scc1 K2_END")
    A(f"ds_read_b128 v[24:27], v{V_PADDR} offset:{AGG}")
    L("K2_EPI")
    srd(SRD_A, OUT_, OUT_+1, N*128)
    A(f"s_mov_b32 s4, 0x{NEGL:x}")
    A(f"s_mul_i32 s5, s2, {BN*128}")
    A("v_lshlrev_b32 v32, 3, v0")
    A(f"v_cmp_gt_u32 vcc, {BN*16}, v0")
    A("s_waitcnt lgkmcnt(0)")
    for i in range(4):
        A(f"v_mul_f32 v{28+i}, s4, v{24+i}")
    for i in range(4):
        A(f"v_exp_f32 v{28+i}, v{28+i}")
    A("s_nop 0")
    for i in range(4):
        A(f"v_add_f32 v{28+i}, 1.0, v{28+i}")
    for i in range(4):
        A(f"v_rcp_f32 v{28+i}, v{28+i}")
    A("s_nop 0")
    for i in range(4):
        A(f"v_mul_f32 v{28+i}, v{24+i}, v{28+i}")
    A("v_cvt_pk_bf16_f32 v24, v28, v29")
    A("v_cvt_pk_bf16_f32 v25, v30, v31")
    A("s_mov_b64 exec, vcc")
    OSC = " " + opt("osc", "none").replace("+", " ").replace("none", "")
    A(f"buffer_store_dwordx2 v[24:25], v32, {s4(SRD_A)}, s5 offen{OSC}")
    if DBG and flag("endwait"): A("s_waitcnt vmcnt(0)")
    rstamp(9)
    dbg_dump(10, S_WAVE, "K2_DBGX", 17, 4, 0, 2, 1)
    L("K2_END")
    A("s_endpgm")

def desc(name, nv, ns=102):
    acc = (nv + 3) // 4 * 4
    return f""".p2align 6
.amdhsa_kernel {name}
  .amdhsa_next_free_vgpr {nv}
  .amdhsa_next_free_sgpr {ns}
  .amdhsa_accum_offset {acc}
  .amdhsa_group_segment_fixed_size 0
  .amdhsa_kernarg_size 80
  .amdhsa_user_sgpr_count 2
  .amdhsa_user_sgpr_kernarg_segment_ptr 1
  .amdhsa_system_sgpr_workgroup_id_x 1
.end_amdhsa_kernel
"""

hdr = f"""; EGC message passing: k1 = edge binning + source-node table, k2 = per-bucket gather/accumulate
; @launch kernel=k1_kernel grid=({NCH+NG+1},1,1) block=({B1},1,1) lds={K1_LDS}
; @launch kernel=k2_kernel grid=({NB},1,1) block=(1024,1,1) lds={K2_LDS}
.amdgcn_target "amdgcn-amd-amdhsa--gfx950"
.text
"""
k1()
k2()
txt = hdr + "\n".join(out) + "\n" + '.section .rodata,"a"\n' + desc("k1_kernel", 112) + desc("k2_kernel", 128)
dst = sys.argv[1] if len(sys.argv) > 1 and not sys.argv[1].startswith("--") else "gather_scatter__edge_featured_mpnn_egc__graph.s"
open(dst, "w").write(txt)
print("wrote", dst, len(txt))
```

```python
import sys, struct, math

def opt0(name, default):
    r = [a[len(name)+3:] for a in sys.argv if a.startswith("--" + name + "=")]
    return r[0] if r else default
N = 12500; E = 800000
NB = 256; BN = 49
CH = 5000; NCH = 160
NG = 79
B1 = 640
T_OFF = 0; REC_OFF = 8 << 20; OFF_OFF = 16 << 20; FR_OFF = 17 << 20
OG = int(opt0("og", "32")); OGL = OG.bit_length() - 1
OFF_GS = 256*OG*4
CS = 29440
FR_B = 16384; FR_S = 17408; FR_SIZE = 17408 + 512
LOG2E = math.log2(math.e)
def f32bits(x): return struct.unpack("<I", struct.pack("<f", x))[0]
NEGL = f32bits(-LOG2E)
KLOG = 2.0
POLY = [1.0/math.factorial(k) for k in range(1, 9)]
def opt(name, default):
    r = [a[len(name)+3:] for a in sys.argv if a.startswith("--" + name + "=")]
    return r[0] if r else default
def flag(name): return ("--" + name) in sys.argv

out = []
def A(s): out.append("    " + s)
def L(s): out.append(s + ":")

def srd(r, lo, hi, nrec, add=0):
    if add:
        A(f"s_add_u32 s{r}, s{lo}, 0x{add:x}")
        A(f"s_addc_u32 s{r+1}, s{hi}, 0")
        A(f"s_and_b32 s{r+1}, s{r+1}, 0xffff")
    else:
        A(f"s_mov_b32 s{r}, s{lo}")
        A(f"s_and_b32 s{r+1}, s{hi}, 0xffff")
    A(f"s_mov_b32 s{r+2}, 0x{nrec:x}")
    A(f"s_mov_b32 s{r+3}, 0x20000")

def v(r, n=1):
    return f"v{r}" if n == 1 else f"v[{r}:{r+n-1}]"
def s4(r): return f"s[{r}:{r+3}]"
def s2(r): return f"s[{r}:{r+1}]"

def scan64(x, op="v_add_u32_dpp"):
    for sh in (1, 2, 4, 8):
        A("s_nop 1")
        A(f"{op} v{x}, v{x}, v{x} row_shr:{sh} row_mask:0xf bank_mask:0xf")
    A("s_nop 1")
    A(f"{op} v{x}, v{x}, v{x} row_bcast:15 row_mask:0xa bank_mask:0xf")
    A("s_nop 1")
    A(f"{op} v{x}, v{x}, v{x} row_bcast:31 row_mask:0xc bank_mask:0xf")

DBG = flag("dbg")
def stamp(idx):
    if DBG:
        A("s_memtime s[98:99]")
        A("s_waitcnt lgkmcnt(0)")
        A(f"s_mov_b32 s{86+idx}, s98")
def rstamp(idx):
    if DBG:
        A("s_memrealtime s[98:99]")
        A("s_waitcnt lgkmcnt(0)")
        A(f"s_mov_b32 s{86+idx}, s98")
def dbg_dump(nst, wave_sgpr, lab, wg=0, nw=4, slot0=0, wsh=0, kidx=0):
    if DBG:
        A(f"s_cmp_lg_u32 s{wave_sgpr}, 0")
        A(f"s_cbranch_scc1 {lab}W")
        srd(96, WS_, WS_+1, 1 << 20, (18 << 20) + kidx*65536)
        A("s_getreg_b32 s3, hwreg(HW_REG_XCC_ID)")
        A("s_mov_b64 exec, 1")
        A("v_mov_b32 v4, s3")
        A("s_getreg_b32 s3, hwreg(HW_REG_HW_ID)")
        A("v_mov_b32 v5, s3")
        A("s_lshl_b32 s3, s2, 4")
        A("v_mov_b32 v1, s3")
        A("v_mov_b32 v2, s94")
        A("v_mov_b32 v3, s95")
        A("buffer_store_dwordx4 v[2:5], v1, s[96:99], 0 offen")
        if flag("odbg"):
            A("s_load_dwordx2 s[98:99], s[0:1], 64")
            A("s_waitcnt lgkmcnt(0)")
            if kidx:
                A(f"s_sub_u32 s98, s98, {512*kidx}")
                A("s_subb_u32 s99, s99, 0")
            srd(96, 98, 99, 256)
            A("v_not_b32 v2, s94")
            A("v_mov_b32 v3, s95")
            A(f"buffer_atomic_umax v2, off, s[96:99], 0 offset:{40+8*kidx}")
            A(f"buffer_atomic_umax v3, off, s[96:99], 0 offset:{44+8*kidx}")
            if kidx:
                A("s_cmp_lg_u32 s2, 17")
                A(f"s_cbranch_scc1 {lab}W")
                A("s_sub_u32 s3, s90, s86")
                A("v_mov_b32 v2, s3")
                A("s_sub_u32 s3, s92, s86")
                A("v_mov_b32 v3, s3")
                A("buffer_store_dwordx2 v[2:3], off, s[96:99], 0 offset:56")
        L(lab + "W")
        A(f"s_cmp_lg_u32 s2, {wg}")
        A(f"s_cbranch_scc1 {lab}")
        A(f"s_and_b32 s3, s{wave_sgpr}, {(1<<wsh)-1}")
        A(f"s_cmp_lg_u32 s3, {(1<<wsh)-1}")
        A(f"s_cbranch_scc1 {lab}")
        A(f"s_lshr_b32 s3, s{wave_sgpr}, {wsh}")
        A(f"s_cmp_ge_u32 s3, {nw}")
        A(f"s_cbranch_scc1 {lab}")
        A("s_load_dwordx2 s[98:99], s[0:1], 64")
        A("s_waitcnt lgkmcnt(0)")
        srd(100-4, 98, 99, 256)
        A("s_mov_b64 exec, 1")
        A(f"s_mul_i32 s3, s3, 64")
        A("v_mov_b32 v1, s3")
        for i in range(nst):
            A(f"v_mov_b32 v2, s{86+i}")
            A(f"buffer_store_dword v2, v1, s[96:99], 0 offen offset:{4*i+64*slot0}")
        L(lab)
X_, E_, SRC_, DST_, U_, V_, G_, OUT_, WS_ = 16, 18, 20, 22, 24, 26, 28, 30, 32

def tr_lane_addr(dst, lane, h, tmp):
    A(f"v_bfe_u32 v{dst}, v{lane}, 2, 2")
    A(f"v_lshl_add_u32 v{dst}, v{h}, 3, v{dst}")
    A(f"v_lshlrev_b32 v{dst}, 7, v{dst}")
    A(f"v_and_b32 v{tmp}, 1, v{lane}")
    A(f"v_lshl_add_u32 v{dst}, v{tmp}, 5, v{dst}")
    A(f"v_bfe_u32 v{tmp}, v{lane}, 4, 1")
    A(f"v_lshl_add_u32 v{dst}, v{tmp}, 4, v{dst}")
    A(f"v_bfe_u32 v{tmp}, v{lane}, 1, 1")
    A(f"v_lshl_add_u32 v{dst}, v{tmp}, 3, v{dst}")

K1_XT = 16384 + 10*4608
K1_LDS = K1_XT + 160*144
SC = " " + opt0("sc", "sc1").replace("+", " ").replace("none", "")
def k1():
    out.append(".globl k1_kernel")
    out.append(".p2align 8")
    out.append(".type k1_kernel,@function")
    L("k1_kernel")
    A(f"s_cmp_gt_u32 s2, {NCH+NG}")
    A("s_cbranch_scc1 K1_END")
    if int(opt("k1delay", "0")): A(f"s_sleep {int(opt('k1delay', '0'))}")
    stamp(0)
    rstamp(8)
    A("s_load_dwordx16 s[16:31], s[0:1], 0")
    A("s_load_dwordx2 s[32:33], s[0:1], 72")
    A("v_lshrrev_b32 v1, 6, v0")
    A("v_lshlrev_b32 v3, 4, v0")
    A("v_readfirstlane_b32 s7, v1")
    A(f"s_cmp_eq_u32 s2, {NCH+NG}")
    A("s_cbranch_scc1 K1_FRAG")
    GF = flag("gemmfirst")
    if GF:
        A(f"s_cmp_lt_u32 s2, {NG}")
        A("s_cbranch_scc1 K1_GEMM")
        A(f"s_sub_u32 s34, s2, {NG}")
    else:
        A(f"s_cmp_ge_u32 s2, {NCH}")
        A("s_cbranch_scc1 K1_GEMM")
        A(f"s_mov_b32 s34, s2")
    HIST, BASE, STAGE = 0, 1024, 2048
    A("v_and_b32 v1, 0xff, v0")
    A("v_lshlrev_b32 v1, 2, v1")
    A("v_mov_b32 v2, 0")
    A("ds_write_b32 v1, v2")
    A("v_lshlrev_b32 v4, 3, v0")
    A(f"s_mul_i32 s3, s34, {CH*4}")
    A(f"s_add_u32 s4, s3, {CH*2}")
    A(f"s_mul_i32 s5, s34, {CH*2}")
    A(f"s_add_u32 s6, s5, {CH}")
    A(f"v_cmp_gt_u32 vcc, {CH//8}, v0")
    A("s_movk_i32 s10, -49")
    A("v_mov_b32 v5, 1")
    A("s_waitcnt lgkmcnt(0)")
    srd(36, DST_, DST_+1, E*4)
    A("s_mov_b64 s[8:9], vcc")
    A("s_mov_b64 exec, vcc")
    A("buffer_load_dwordx4 v[8:11], v3, s[36:39], s3 offen")
    A("buffer_load_dwordx4 v[12:15], v3, s[36:39], s4 offen")
    srd(40, SRC_, SRC_+1, E*4)
    A("buffer_load_dwordx4 v[16:19], v3, s[40:43], s3 offen")
    A("buffer_load_dwordx4 v[20:23], v3, s[40:43], s4 offen")
    srd(44, E_, E_+1, E*2)
    A("buffer_load_dwordx2 v[24:25], v4, s[44:47], s5 offen")
    A("buffer_load_dwordx2 v[26:27], v4, s[44:47], s6 offen")
    srd(48, WS_, WS_+1, NCH*CS, REC_OFF)
    srd(52, WS_, WS_+1, 256*1024, OFF_OFF)
    A("s_barrier")
    stamp(1)
    for half in range(2):
        A(f"s_waitcnt vmcnt({5-half})")
        if half == 0: stamp(2)
        for i in range(4*half, 4*half+4):
            A(f"v_mul_u32_u24 v{28+i}, 5350, v{8+i}")
            A(f"v_lshrrev_b32 v{60+i}, 18, v{28+i}")
            A(f"v_lshlrev_b32 v{28+i}, 2, v{60+i}")
            A(f"ds_add_rtn_u32 v{36+i}, v{28+i}, v5")
            A(f"v_lshlrev_b32 v{8+i}, 2, v{8+i}")
            A(f"v_mad_i32_i24 v{8+i}, v{28+i}, s10, v{8+i}")
    A("s_mov_b32 s11, 0xffff0000")
    A("s_movk_i32 s13, 21846")
    for i in range(8):
        A(f"s_waitcnt lgkmcnt({7-i})")
        A(f"v_mul_u32_u24 v{44+i}, s13, v{36+i}")
        A(f"v_lshrrev_b32 v{44+i}, 16, v{44+i}")
        A(f"v_mad_u32_u24 v{52+i}, v{44+i}, 13, v{36+i}")
        A(f"v_add_u32 v{44+i}, v{44+i}, v{36+i}")
    stamp(3)
    A("s_barrier")
    stamp(4)
    A("s_mov_b64 exec, -1")
    A("v_and_b32 v1, 63, v0")
    A("v_lshlrev_b32 v1, 4, v1")
    A(f"ds_read_b128 v[60:63], v1 offset:{HIST}")
    A("s_waitcnt lgkmcnt(0)")
    for i in range(4):
        A(f"v_add_u32 v{80+i}, 2, v{60+i}")
    for i in range(4):
        A(f"v_mul_u32_u24 v{80+i}, s13, v{80+i}")
    for i in range(4):
        A(f"v_lshrrev_b32 v{80+i}, 16, v{80+i}")
    A("v_add_u32 v65, v80, v81")
    A("v_add_u32 v66, v65, v82")
    A("v_add_u32 v67, v66, v83")
    A("v_mov_b32 v68, v67")
    scan64(68)
    A("s_nop 0")
    A("v_readlane_b32 s14, v68, 63")
    A("v_sub_u32 v68, v68, v67")
    A("v_add_u32 v69, v68, v80")
    A("v_add_u32 v70, v68, v65")
    A("v_add_u32 v71, v68, v66")
    A(f"v_mov_b32 v6, {STAGE}")
    for i in range(4):
        A(f"v_lshl_add_u32 v{72+i}, v{68+i}, 4, v6")
    A(f"ds_write_b128 v1, v[72:75] offset:{BASE}")
    A("s_waitcnt vmcnt(0)")
    A("s_cmp_lg_u32 s7, 9")
    A("s_cbranch_scc1 K1_NOOFF")
    for i in range(4):
        A(f"v_lshl_or_b32 v{76+i}, v{68+i}, 16, v{60+i}")
    A(f"s_lshl_b32 s12, s34, {OGL+2}")
    A(f"v_lshrrev_b32 v2, {OGL+2}, v1")
    A(f"v_and_b32 v80, {OG*4-1}, v1")
    A(f"v_lshl_or_b32 v2, v2, {OGL+10}, v80")
    A(f"buffer_store_dwordx4 v[76:79], v2, s[52:55], s12 offen{SC}")
    L("K1_NOOFF")
    A("s_add_u32 s14, s14, 7")
    A("s_and_b32 s14, s14, -8")
    A("s_lshl_b32 s14, s14, 4")
    A(f"s_sub_u32 s14, s14, {B1*32}")
    A("v_cmp_gt_u32 vcc, s14, v3")
    A("s_waitcnt lgkmcnt(0)")
    A("s_nop 0")
    A("v_cndmask_b32 v7, 0.5, v3, vcc")
    A("s_mov_b64 exec, s[8:9]")
    for i in range(8):
        A(f"ds_read_b32 v{60+i}, v{28+i} offset:{BASE}")
    for i in range(4):
        A(f"v_lshl_or_b32 v{16+2*i}, v{24+i}, 16, v{16+2*i}")
        A(f"v_and_or_b32 v{17+2*i}, v{24+i}, s11, v{17+2*i}")
    for i in range(8):
        A(f"s_waitcnt lgkmcnt({7+i})")
        A(f"v_lshl_add_u32 v{44+i}, v{44+i}, 2, v{60+i}")
        A(f"v_add_u32 v{52+i}, v{52+i}, v{60+i}")
        A(f"ds_write_b32 v{44+i}, v{16+i}")
        A(f"ds_write_b8 v{52+i}, v{8+i} offset:12")
    A(f"s_mul_i32 s12, s34, {CS}")
    A(f"s_add_u32 s13, s12, {B1*16}")
    A(f"s_add_u32 s14, s12, {B1*32}")
    A("s_mov_b64 exec, -1")
    A("s_waitcnt lgkmcnt(0)")
    A("s_barrier")
    stamp(5)
    for k in range(3):
        A(f"ds_read_b128 v[{8+4*k}:{11+4*k}], v3 offset:{STAGE+B1*16*k}")
    for k in range(3):
        A(f"s_waitcnt lgkmcnt({2-k})")
        A(f"buffer_store_dwordx4 v[{8+4*k}:{11+4*k}], v{7 if k == 2 else 3}, s[48:51], s{12+k} offen{SC}")
    if DBG: A("s_waitcnt vmcnt(0)")
    stamp(6)
    rstamp(9)
    dbg_dump(10, 7, "K1_DBGB", 117, 2, 0, 0)
    A("s_endpgm")
    L("K1_GEMM")
    if GF: A(f"s_mov_b32 s3, s2")
    else: A(f"s_sub_u32 s3, s2, {NCH}")
    A("s_cmp_ge_u32 s7, 5")
    A("s_cselect_b32 s6, 1, 0")
    A("s_mul_i32 s4, s6, 5")
    A("s_sub_u32 s4, s7, s4")
    A("v_and_b32 v1, 63, v0")
    A("v_and_b32 v2, 31, v1")
    A("v_lshrrev_b32 v4, 5, v1")
    A("s_mul_i32 s8, s3, 160")
    A("s_lshl_b32 s9, s4, 5")
    A("s_add_u32 s8, s8, s9")
    A("v_add_u32 v2, s9, v2")
    A("v_mul_u32_u24 v5, 144, v2")
    A("v_lshl_add_u32 v5, v4, 4, v5")
    A("v_lshrrev_b32 v107, 3, v0")
    A("v_mul_u32_u24 v107, 144, v107")
    A("v_and_b32 v7, 7, v0")
    A("v_lshl_add_u32 v107, v7, 4, v107")
    A(f"v_add_u32 v107, {K1_XT}, v107")
    A(f"s_mul_i32 s12, s3, {160*128}")
    A(f"s_add_u32 s13, s12, {80*128}")
    A("v_and_b32 v108, 0x1ff0, v3")
    A("s_waitcnt lgkmcnt(0)")
    srd(48, X_, X_+1, N*128)
    A("buffer_load_dwordx4 v[16:19], v3, s[48:51], s12 offen")
    A("buffer_load_dwordx4 v[20:23], v3, s[48:51], s13 offen")
    srd(36, G_, G_+1, 129*128)
    A("s_movk_i32 s10, 0x2000")
    A("buffer_load_dwordx4 v[8:11], v108, s[36:39], s10 offen")
    srd(40, V_, V_+1, 8192)
    A("buffer_load_dwordx4 v[12:15], v108, s[40:43], 0 offen")
    stamp(1)
    srd(52, WS_, WS_+1, N*256, T_OFF)
    tr_lane_addr(6, 1, 4, 7)
    A("s_lshl_b32 s11, s6, 6")
    A("v_add_u32 v6, s11, v6")
    A("s_mul_i32 s11, s7, 4608")
    A("s_add_u32 s11, s11, 16384")
    A("v_and_b32 v104, 31, v1")
    A("v_mul_u32_u24 v104, 144, v104")
    A("v_lshl_add_u32 v104, v4, 6, v104")
    A("v_add_u32 v104, s11, v104")
    A("v_lshrrev_b32 v105, 3, v1")
    A("v_and_b32 v106, 7, v1")
    A("v_lshlrev_b32 v106, 4, v106")
    A("v_add_u32 v2, s8, v105")
    A("v_mul_u32_u24 v105, 144, v105")
    A("v_add3_u32 v105, v105, v106, s11")
    A("v_lshl_add_u32 v2, v2, 8, v106")
    A("s_lshl_b32 s11, s6, 7")
    A("v_add_u32 v2, s11, v2")
    for k in range(2):
        A(f"s_waitcnt vmcnt({3-k})")
        if k == 0: stamp(2)
        A(f"ds_write_b128 v107, v[{16+4*k}:{19+4*k}] offset:{80*144*k}")
    for k in range(2):
        A(f"s_waitcnt vmcnt({1-k})")
        A(f"ds_write_b128 v108, v[{8+4*k}:{11+4*k}] offset:{8192*k}")
    A("s_waitcnt lgkmcnt(0)")
    stamp(3)
    A("s_barrier")
    stamp(4)
    AX, AH, DX, DH = 40, 56, 72, 88
    for sidx in range(4):
        A(f"ds_read_b128 v[{24+4*sidx}:{27+4*sidx}], v5 offset:{K1_XT+32*sidx}")
    for sidx in range(4):
        for u in range(2):
            A(f"ds_read_b64_tr_b16 v[{AX+4*sidx+2*u}:{AX+4*sidx+2*u+1}], v6 offset:{sidx*2048+u*512}")
        for u in range(2):
            A(f"ds_read_b64_tr_b16 v[{AH+4*sidx+2*u}:{AH+4*sidx+2*u+1}], v6 offset:{8192+sidx*2048+u*512}")
    for sidx in range(4):
        A(f"s_waitcnt lgkmcnt({14-4*sidx})")
        cx = "0" if sidx == 0 else v(DX, 16)
        A(f"v_mfma_f32_32x32x16_bf16 {v(DX,16)}, {v(AX+4*sidx,4)}, {v(24+4*sidx,4)}, {cx}")
        A(f"s_waitcnt lgkmcnt({12-4*sidx})")
        ch = "0" if sidx == 0 else v(DH, 16)
        A(f"v_mfma_f32_32x32x16_bf16 {v(DH,16)}, {v(AH+4*sidx,4)}, {v(24+4*sidx,4)}, {ch}")
    A(f"s_mov_b32 s40, 0x{NEGL:x}")
    A("s_mov_b32 s41, 0x00800000")
    A("s_mov_b32 s42, 0x7fff0000")
    A("s_mov_b32 s43, 0x80000000")
    A("s_nop 7")
    A("s_nop 3")
    for i in range(16):
        A(f"v_fma_f32 v{DX+i}, s40, v{DX+i}, {KLOG}")
    for i in range(16):
        A(f"v_exp_f32 v{DX+i}, v{DX+i}")
    def comp(dst, B, lo, t1, t2):
        A(f"v_max_f32 v{t1}, abs(v{B}), s41")
        A(f"v_and_or_b32 v{t2}, v{B}, s43, v{lo}")
        A(f"v_sub_u32 v{t1}, v{t1}, v{lo}")
        A(f"v_add_u32 v{t1}, 0x8000, v{t1}")
        A(f"v_bfi_b32 v{dst}, s42, v{t1}, v{t2}")
    for grp in range(2):
        ps = [4*grp + j for j in range(4)]
        T1 = [8, 9, 10, 11]; T2 = [12, 13, 14, 15]; LO = [16, 17, 18, 19]
        for j, p in enumerate(ps):
            A(f"v_cvt_pk_bf16_f32 v{LO[j]}, v{DH+2*p}, 0")
        for j, p in enumerate(ps):
            comp(DX+2*p, DX+2*p, LO[j], T1[j], T2[j])
        for j, p in enumerate(ps):
            A(f"v_lshrrev_b32 v{LO[j]}, 16, v{DX+2*p}")
        for j, p in enumerate(ps):
            comp(DH+2*p+1, DH+2*p+1, LO[j], T1[j], T2[j])
        for j, p in enumerate(ps):
            A(f"v_lshrrev_b32 v{LO[j]}, 16, v{DH+2*p+1}")
        for j, p in enumerate(ps):
            comp(DX+2*p+1, DX+2*p+1, LO[j], T1[j], T2[j])
        for k in range(2):
            kk = 2*grp + k
            A(f"ds_write_b128 v104, v[{DX+4*kk}:{DX+4*kk+3}] offset:{16*kk}")
    A("s_waitcnt lgkmcnt(0)")
    for i in range(4):
        A(f"ds_read_b128 v[{8+4*i}:{11+4*i}], v105 offset:{8*144*i}")
    for i in range(4):
        A(f"s_waitcnt lgkmcnt({3-i})")
        A(f"buffer_store_dwordx4 v[{8+4*i}:{11+4*i}], v2, s[52:55], 0 offen offset:{2048*i if i < 2 else 2048*(i-2)}{SC}")
        if i == 1: A("v_add_u32 v2, 4096, v2")
    stamp(5)
    if DBG: A("s_waitcnt vmcnt(0)")
    stamp(6)
    rstamp(9)
    dbg_dump(10, 7, "K1_DBGG", 50 if GF else 200, 2, 2, 0)
    A("s_endpgm")
    L("K1_FRAG")
    A("s_cmp_ge_u32 s7, 8")
    A("s_cbranch_scc1 K1_END")
    A("v_and_b32 v1, 63, v0")
    A("v_lshrrev_b32 v4, 5, v1")
    A("v_and_b32 v5, 15, v1")
    A("v_lshrrev_b32 v6, 4, v1")
    A("v_lshlrev_b32 v6, 1, v6")
    A("v_lshl_add_u32 v5, v5, 3, v6")
    A("s_waitcnt lgkmcnt(0)")
    srd(36, G_, G_+1, 129*128)
    A("buffer_load_dwordx4 v[8:11], v3, s[36:39], 0 offen")
    srd(40, U_, U_+1, 8192)
    A("buffer_load_dwordx4 v[12:15], v3, s[40:43], 0 offen")
    A("s_movk_i32 s4, 0x4000")
    A("buffer_load_ushort v20, v5, s[36:39], s4 offen")
    srd(52, WS_, WS_+1, FR_SIZE, FR_OFF)
    tr_lane_addr(6, 1, 4, 7)
    A("s_lshr_b32 s4, s7, 1")
    A("s_and_b32 s5, s7, 1")
    A("s_lshl_b32 s4, s4, 13")
    A("s_lshl_b32 s5, s5, 6")
    A("s_add_u32 s4, s4, s5")
    A("v_add_u32 v6, s4, v6")
    A("v_lshlrev_b32 v2, 4, v1")
    for k in range(2):
        A(f"s_waitcnt vmcnt({2-k})")
        A(f"ds_write_b128 v3, v[{8+4*k}:{11+4*k}] offset:{8192*k}")
    A("s_waitcnt lgkmcnt(0)")
    A("s_barrier")
    A("s_cmp_eq_u32 s7, 4")
    A("s_cbranch_scc1 K1_COEF")
    A("s_cmp_gt_u32 s7, 4")
    A("s_cbranch_scc1 K1_END")
    for sidx in range(4):
        for u in range(2):
            A(f"ds_read_b64_tr_b16 v[{40+4*sidx+2*u}:{40+4*sidx+2*u+1}], v6 offset:{sidx*2048+u*512}")
    A("s_lshl_b32 s4, s7, 12")
    for sidx in range(4):
        A(f"s_waitcnt lgkmcnt({6-2*sidx})")
        A(f"buffer_store_dwordx4 v[{40+4*sidx}:{43+4*sidx}], v2, s[52:55], s4 offen offset:{1024*sidx}{SC}")
    A("s_endpgm")
    L("K1_COEF")
    A("s_waitcnt vmcnt(0)")
    A("v_lshlrev_b32 v20, 16, v20")
    A("v_and_b32 v60, 0x7fffffff, v20")
    scan64(60, "v_max_u32_dpp")
    A("s_nop 1")
    A("v_readlane_b32 s5, v60, 63")
    A("s_lshr_b32 s4, s5, 23")
    A("s_max_u32 s4, s4, 1")
    A("s_lshl_b32 s8, s4, 23")
    A("s_cmp_gt_u32 s4, 253")
    A("s_cselect_b32 s8, 0x7fc00000, s8")
    A("s_min_u32 s4, s4, 253")
    A("s_sub_u32 s4, 254, s4")
    A("s_lshl_b32 s4, s4, 23")
    A("s_or_b32 s4, s4, 0x80000000")
    A("v_mov_b32 v70, s5")
    A("v_mul_f32 v60, s4, v20")
    A("v_mul_f32 v70, s4, v70")
    A("v_mul_f32 v70, v70, v70")
    A("v_max_f32 v70, 1.0, v70")
    A("v_rcp_f32 v71, v70")
    A("v_mov_b32 v70, s8")
    for k in range(1, 8):
        A(f"v_mul_f32 v{60+k}, v{60+k-1}, v60")
    for k in range(1, 8):
        A(f"v_mul_f32 v{60+k}, 0x{f32bits(POLY[k]):x}, v{60+k}")
    for k in range(8):
        A(f"v_cvt_f16_f32 v{60+k}, v{60+k}")
    for k in range(4):
        A(f"v_pack_b32_f16 v{40+k}, v{60+2*k}, v{61+2*k}")
    A(f"s_movk_i32 s4, {FR_B}")
    A(f"buffer_store_dwordx4 v[40:43], v2, s[52:55], s4 offen{SC}")
    A("v_lshlrev_b32 v2, 3, v1")
    A(f"buffer_store_dwordx2 v[70:71], v2, s[52:55], s4 offen offset:{FR_S-FR_B}{SC}")
    L("K1_END")
    A("s_endpgm")


RS_ = 272
AGG, IA, XAL = 0, 52*RS_, 104*RS_
CNT = 156*RS_; SPN = CNT + 512; ZR = CNT + 1024
SI = CNT + 2048
CAP = 4096
PW = SI + (CAP + 256)*4
XT = PW
SLOT = PW + CAP*16 + 2560
SS = 516
SP = SLOT + 26112
K2_LDS = SP + 4096
assert PW % 16 == 0 and PW < 65536 and SLOT % 16 == 0 and K2_LDS <= 163840 and BN*SS + 8 <= 25600
DUMMY = 0x7b00

def k2():
    out.append(".globl k2_kernel")
    out.append(".p2align 8")
    out.append(".type k2_kernel,@function")
    L("k2_kernel")
    A(f"s_cmp_ge_u32 s2, {NB}")
    A("s_cbranch_scc1 K2_END")
    if int(opt("k2delay", "0")): A(f"s_sleep {int(opt('k2delay', '0'))}")
    stamp(0)
    rstamp(8)
    if DBG: A("s_mov_b32 s93, 0")
    A("s_load_dwordx16 s[16:31], s[0:1], 0")
    A("s_load_dwordx2 s[32:33], s[0:1], 72")
    A("s_and_b32 s3, s2, 7")
    A("s_lshr_b32 s2, s2, 3")
    A("s_lshl_b32 s3, s3, 5")
    A("s_or_b32 s2, s2, s3")
    S_WAVE = 7
    SRD_T, SRD_REC, SRD_A, SRD_G, SRD_X = 36, 40, 44, 48, 52
    S_W, S_OFFB, S_MODE, S_ESC = 56, 57, 58, 59
    S_M = 60
    S_NE, S_NE2 = 60, 62
    S_QR, S_DEL, S_NN, S_NST = 64, 65, 66, 67
    S_Q, S_Q1, S_RUN, S_QB, S_REM, S_END, S_BIG, S_CNODE = 74, 75, 76, 77, 78, 79, 80, 81
    S_RET = 82
    S_I, S_NODE = 84, 85
    S_THR, S_RET2 = 6, 34
    V_LANE, V_LOFF, V_PADDR, V_FOUR, V_RADDR, V_SUB3, V_CB, V_W, V_OFF = 1, 2, 3, 4, 5, 6, 7, 8, 9
    V_B = 10
    V_SC = 14
    V_END, V_BQ, V_DEL = 18, 19, 20
    V_R = 24
    V_LA = 36
    V_A = 48
    V_XD = 52
    GA, GD, V_X = 64, 80, 96
    PFL = int(flag("pf")); PFE = int(flag("pfe")); OT = int(flag("otouch"))
    NP = PFL + OT
    def prefetch():
        A("s_and_b32 s3, s2, 31")
        A("s_mul_i32 s3, s3, 391")
        A("v_lshrrev_b32 v126, 1, v0")
        A("v_add_u32 v126, s3, v126")
        A("v_cmp_gt_u32 vcc, 782, v0")
        A("v_and_b32 v127, 1, v0")
        A("v_lshlrev_b32 v127, 7, v127")
        A("v_cndmask_b32 v126, -1, v126, vcc")
        A(f"buffer_load_dword v126, v[126:127], {s4(SRD_T)}, 0 idxen offen")
    A("v_lshrrev_b32 v22, 6, v0")
    A(f"v_and_b32 v{V_LANE}, 63, v0")
    A(f"v_readfirstlane_b32 s{S_WAVE}, v22")
    A(f"v_mul_u32_u24 v{V_W}, 10923, v0")
    A(f"v_lshrrev_b32 v{V_W}, 16, v{V_W}")
    A(f"v_lshlrev_b32 v19, {OGL+2}, v{V_W}")
    A(f"v_cmp_gt_u32 vcc, {NCH}, v{V_W}")
    A(f"s_lshr_b32 s3, s2, {OGL}")
    A(f"s_lshl_b32 s3, s3, {OGL+10}")
    A(f"s_and_b32 s4, s2, {OG-1}")
    A(f"s_lshl2_add_u32 s{S_OFFB}, s4, s3")
    A(f"v_cndmask_b32 v19, 0.5, v19, vcc")
    A("v_and_b32 v22, 15, v0")
    A(f"v_lshlrev_b32 v{V_LOFF}, 4, v22")
    A(f"v_lshlrev_b32 v22, 4, v{V_LANE}")
    A(f"v_lshlrev_b32 v21, 3, v{V_LANE}")
    A(f"s_lshr_b32 s9, s{S_WAVE}, 1")
    A("s_lshl_b32 s5, s9, 12")
    A(f"s_movk_i32 s4, {FR_B}")
    A(f"s_mul_i32 s8, s2, {BN*128}")
    A(f"s_lshl_b32 s9, s{S_WAVE}, 10")
    A("s_add_u32 s8, s8, s9")
    A("s_sub_u32 s8, s8, 8192")
    A(f"v_mul_u32_u24 v{V_CB}, {SS}, v{V_LANE}")
    A(f"v_add_u32 v{V_CB}, {SLOT}, v{V_CB}")
    A("v_cmp_gt_u32 vcc, 64, v0")
    A("v_and_b32 v23, 511, v0")
    A("v_lshlrev_b32 v23, 2, v23")
    A(f"v_cndmask_b32 v48, 0, v{V_CB}, vcc")
    A("v_cmp_gt_u32 vcc, 512, v0")
    for i in range(4):
        A(f"v_mov_b32 v{56+i}, 0x{DUMMY:x}")
    A("v_lshlrev_b32 v49, 4, v0")
    A(f"v_add_u32 v49, {SLOT}, v49")
    A("s_mov_b64 exec, vcc")
    A(f"ds_write_b32 v23, v48 offset:{CNT}")
    A("s_mov_b64 exec, -1")
    A("v_cmp_gt_u32 vcc, 576, v0")
    A("ds_write_b128 v49, v[56:59]")
    A("s_mov_b64 exec, vcc")
    A("ds_write_b128 v49, v[56:59] offset:16384")
    A("s_mov_b64 exec, -1")
    A("s_waitcnt lgkmcnt(0)")
    srd(SRD_A, WS_, WS_+1, 256*1024, OFF_OFF)
    A(f"buffer_load_dword v{V_OFF}, v19, {s4(SRD_A)}, s{S_OFFB} offen")
    srd(12, WS_, WS_+1, FR_SIZE, FR_OFF)
    srd(SRD_X, X_, X_+1, N*128)
    A(f"s_cmp_ge_u32 s{S_WAVE}, 8")
    A("s_cbranch_scc1 K2_LX")
    for sidx in range(4):
        A(f"buffer_load_dwordx4 {v(GA+4*sidx,4)}, v22, s[12:15], s5 offen offset:{1024*sidx}")
    A("s_branch K2_LJ")
    L("K2_LX")
    A(f"buffer_load_dwordx4 {v(V_XD,4)}, v22, {s4(SRD_X)}, s8 offen")
    L("K2_LJ")
    A(f"buffer_load_dwordx4 {v(V_B,4)}, v22, s[12:15], s4 offen")
    A(f"buffer_load_dwordx2 {v(V_SC,2)}, v21, s[12:15], s4 offen offset:{FR_S-FR_B}")
    srd(SRD_G, G_, G_+1, 129*128)
    srd(SRD_T, WS_, WS_+1, N, T_OFF)
    A(f"s_or_b32 s{SRD_T+1}, s{SRD_T+1}, 0x1000000")
    if PFE: prefetch()
    srd(SRD_REC, WS_, WS_+1, NCH*CS, REC_OFF)
    A(f"s_mov_b32 s{S_MODE}, 0")
    A(f"v_lshrrev_b32 v{V_PADDR}, 4, v0")
    A(f"v_mul_u32_u24 v{V_PADDR}, {RS_}, v{V_PADDR}")
    A(f"v_add_u32 v{V_PADDR}, v{V_PADDR}, v{V_LOFF}")
    A(f"v_mul_u32_u24 v23, 6, v{V_W}")
    A(f"v_sub_u32 v23, v0, v23")
    A(f"v_mul_u32_u24 v{V_SUB3}, 3, v23")
    A(f"v_mul_u32_u24 v22, {CS//16}, v{V_W}")
    A(f"v_add_u32 v22, v22, v23")
    A(f"v_mov_b32 v{V_FOUR}, 4")
    A(f"v_mov_b32 v51, 0.5")
    A(f"s_cmp_ge_u32 s{S_WAVE}, 8")
    A("s_cbranch_scc1 K2_W2")
    A(f"s_waitcnt vmcnt({6+PFE})")
    A("s_branch K2_W3")
    L("K2_W2")
    A(f"s_waitcnt vmcnt({3+PFE})")
    L("K2_W3")
    stamp(1)
    A(f"v_and_b32 v23, 0xffff, v{V_OFF}")
    A(f"v_lshrrev_b32 v{V_RADDR}, 16, v{V_OFF}")
    A(f"v_sub_u32 v23, v23, v{V_SUB3} clamp")
    A(f"v_add_lshl_u32 v{V_RADDR}, v{V_RADDR}, v22, 4")
    for r in range(3):
        A(f"v_cmp_lt_u32 {s2(S_M+6*r)}, {18*r}, v23")
    for r in range(3):
        A(f"v_cndmask_b32 v{V_A+r}, v51, v{V_RADDR}, {s2(S_M+6*r)}")
        A(f"buffer_load_dwordx4 {v(V_R+4*r,4)}, v{V_A+r}, {s4(SRD_REC)}, 0 offen offset:{96*r}")
    if PFL: prefetch()
    if OT:
        srd(12, OUT_, OUT_+1, N*128)
        A(f"s_mul_i32 s5, s2, {BN*128}")
        A("buffer_load_dword v127, off, s[12:15], s5")
    for r in range(3):
        for j in (1, 2):
            A(f"v_cmp_lt_u32 {s2(S_M+6*r+2*j)}, {18*r+j}, v23")
    A(f"s_cmp_lt_u32 s{S_WAVE}, 8")
    A("s_cbranch_scc1 K2_GEMM")
    A(f"v_lshrrev_b32 v56, 3, v0")
    A(f"v_mul_u32_u24 v56, 144, v56")
    A(f"v_and_b32 v57, 7, v0")
    A(f"v_lshl_add_u32 v56, v57, 4, v56")
    A(f"s_waitcnt vmcnt({5+NP+PFE})")
    A(f"ds_write_b128 v56, {v(V_XD,4)} offset:{XT-64*144}")
    A("s_waitcnt lgkmcnt(0)")
    A("s_barrier")
    A("s_branch K2_RANK")
    L("K2_GEMM")
    A(f"s_and_b32 s8, s{S_WAVE}, 1")
    A("s_lshl_b32 s8, s8, 5")
    A(f"v_and_b32 v56, 31, v{V_LANE}")
    A(f"v_lshrrev_b32 v57, 5, v{V_LANE}")
    A(f"v_add_u32 v56, s8, v56")
    A(f"v_mul_u32_u24 v58, 144, v56")
    A(f"v_lshl_add_u32 v58, v57, 4, v58")
    A(f"s_lshr_b32 s4, s{S_WAVE}, 2")
    A(f"s_bfe_u32 s5, s{S_WAVE}, 0x10001")
    A(f"v_mul_u32_u24 v59, {RS_}, v56")
    A("v_lshl_add_u32 v59, v57, 6, v59")
    A("s_lshl_b32 s9, s5, 7")
    A("v_add_u32 v59, s9, v59")
    A(f"v_cmp_gt_u32 s[10:11], {BN}, v56")
    A("s_barrier")
    for sidx in range(4):
        A(f"ds_read_b128 {v(V_X+4*sidx,4)}, v58 offset:{XT+32*sidx}")
    A(f"s_waitcnt vmcnt({5+NP+PFE})")
    for sidx in range(4):
        A(f"s_waitcnt lgkmcnt({3-sidx})")
        c = "0" if sidx == 0 else v(GD, 16)
        A(f"v_mfma_f32_32x32x16_bf16 {v(GD,16)}, {v(GA+4*sidx,4)}, {v(V_X+4*sidx,4)}, {c}")
    A(f"s_mov_b32 s8, 0x{NEGL:x}")
    A(f"s_mov_b32 s9, 0x{f32bits(3.3):x}")
    A("s_nop 7")
    A("s_nop 3")
    A("s_cmp_lg_u32 s4, 0")
    A("s_mov_b64 exec, s[10:11]")
    A("s_cbranch_scc1 K2_GU")
    for i in range(16):
        A(f"v_mul_f32 v{GD+i}, s8, v{GD+i}")
    for kk in range(4):
        A(f"ds_write_b128 v59, {v(GD+4*kk,4)} offset:{XAL+16*kk}")
    for i in range(16):
        A(f"v_sub_f32 v{GA+i}, {KLOG}, v{GD+i}")
    A(f"v_max_f32 v60, v{GD}, v{GD+1}")
    for i in range(7):
        A(f"v_max3_f32 v60, v60, v{GD+2+2*i}, v{GD+3+2*i}")
    A("v_cmp_ge_f32 vcc, s9, v60")
    for i in range(16):
        A(f"v_exp_f32 v{GA+i}, v{GA+i}")
    A(f"v_cndmask_b32 v{GA}, -1, v{GA}, vcc")
    for kk in range(4):
        A(f"ds_write_b128 v59, {v(GA+4*kk,4)} offset:{IA+16*kk}")
    A("s_branch K2_GJ")
    L("K2_GU")
    for kk in range(4):
        A(f"ds_write_b128 v59, {v(GD+4*kk,4)} offset:{AGG+16*kk}")
    L("K2_GJ")
    A("s_mov_b64 exec, -1")
    L("K2_RANK")
    def nodebyte(dst, src, j):
        if j == 0: A(f"v_and_b32 v{dst}, 0xff, v{src}")
        else: A(f"v_bfe_u32 v{dst}, v{src}, {8*j}, 8")
    A(f"s_mov_b32 s8, {SLOT+25592}")
    for r in range(2):
        A(f"s_waitcnt vmcnt({2-r+NP})")
        for j in range(3):
            nodebyte(V_LA+3*r+j, V_R+4*r+3, j)
        for j in range(3):
            A(f"s_mov_b64 exec, {s2(S_M+6*r+2*j)}")
            A(f"ds_add_rtn_u32 v{V_LA+3*r+j}, v{V_LA+3*r+j}, v{V_FOUR} offset:{CNT}")
        A("s_mov_b64 exec, -1")
    for k in range(6):
        r, j = divmod(k, 3)
        A("s_waitcnt lgkmcnt(5)")
        A(f"s_mov_b64 exec, {s2(S_M+6*r+2*j)}")
        A(f"v_min_u32 v{V_LA+k}, s8, v{V_LA+k}")
        A(f"ds_write_b32 v{V_LA+k}, v{V_R+4*r+j}")
    A("s_mov_b64 exec, -1")
    A(f"s_waitcnt vmcnt({NP})")
    A(f"v_readfirstlane_b32 s{S_ESC}, v{V_SC}")
    A(f"v_readfirstlane_b32 s{S_THR}, v{V_SC+1}")
    A(f"s_cmp_eq_u64 {s2(S_M+12)}, 0")
    A("s_cbranch_scc1 K2_NOR3")
    for j in range(3):
        nodebyte(V_LA+6+j, V_R+11, j)
    for j in range(3):
        A(f"s_mov_b64 exec, {s2(S_M+12+2*j)}")
        A(f"ds_add_rtn_u32 v{V_LA+6+j}, v{V_LA+6+j}, v{V_FOUR} offset:{CNT}")
    A("s_waitcnt lgkmcnt(0)")
    for j in range(3):
        A(f"s_mov_b64 exec, {s2(S_M+12+2*j)}")
        A(f"v_min_u32 v{V_LA+6+j}, s8, v{V_LA+6+j}")
        A(f"ds_write_b32 v{V_LA+6+j}, v{V_R+8+j}")
    A("s_mov_b64 exec, -1")
    A("v_cmpx_lt_u32 vcc, 54, v23")
    A("v_mov_b32 v56, 0")
    A("v_mov_b32 v57, 0x100000")
    A(f"ds_write_b32 v56, v57 offset:{CNT+252}")
    A("s_mov_b64 exec, -1")
    L("K2_NOR3")
    A(f"v_lshlrev_b32 v52, 2, v{V_LANE}")
    A("s_waitcnt lgkmcnt(0)")
    stamp(2)
    A("s_barrier")
    stamp(3)
    A(f"ds_read_b32 v53, v52 offset:{CNT}")
    A("s_waitcnt lgkmcnt(0)")
    A(f"v_sub_u32 v53, v53, v{V_CB}")
    A("v_add_u32 v56, 12, v53")
    A("v_lshrrev_b32 v56, 4, v56")
    A(f"v_mov_b32 v{V_END}, v56")
    scan64(V_END)
    A("v_cmp_lt_u32 vcc, 32, v56")
    A(f"v_cmp_ne_u32 {s2(S_NE)}, 0, v56")
    A(f"v_readlane_b32 s12, v{V_END}, 63")
    A(f"v_sub_u32 v{V_BQ}, v{V_END}, v56")
    A(f"v_lshlrev_b32 v57, 4, v{V_BQ}")
    A(f"v_sub_u32 v{V_DEL}, v{V_CB}, v57")
    A("s_cbranch_vccnz K2_GENERAL")
    A(f"s_cmp_gt_u32 s12, {CAP//4}")
    A("s_cbranch_scc1 K2_GENERAL")
    L("K2_SETUP")
    IX = 24
    AR = 32
    PR = 48
    DS = 56
    VIA, VIAN, VN, VD, VACC, VS, VH, VU, VT = 72, 76, 80, 84, 88, 92, 96, 100, 104
    VRA, VRI, VINC, VDST, VG4, VNX, VREC, VP4, VLQ, VDL = 108, 109, 110, 111, 112, 113, 114, 115, 116, 117
    SL = 118
    VPREV, VPN = 124, 125
    S_PAR = 9
    A(f"s_mul_i32 s13, s12, s{S_WAVE}")
    A(f"s_add_u32 s14, s13, s12")
    A(f"s_lshr_b32 s{S_Q}, s13, 4")
    A(f"s_lshr_b32 s{S_Q1}, s14, 4")
    A(f"v_cmp_lt_u32 vcc, s{S_Q}, v{V_END}")
    A(f"s_mov_b32 s4, 0x7fffffff")
    A(f"v_writelane_b32 v{V_BQ}, s4, 63")
    A(f"s_lshl_b32 s15, s{S_WAVE}, 2")
    A(f"v_mov_b32 v{VU}, s15")
    A(f"v_mov_b32 v{VU+1}, 0xffff")
    A(f"ds_write_b32 v{VU}, v{VU+1} offset:{SPN}")
    A(f"s_cmp_eq_u32 s{S_Q}, s{S_Q1}")
    if flag("xnomain"): A(f"s_cmp_eq_u32 s{S_Q}, s{S_Q}")
    A("s_cbranch_scc1 K2_MAINDONE")
    A(f"s_and_b64 {s2(S_NE)}, {s2(S_NE)}, vcc")
    A(f"s_ff1_i32_b64 s{S_CNODE}, {s2(S_NE)}")
    A(f"s_bitset0_b64 {s2(S_NE)}, s{S_CNODE}")
    A(f"s_mov_b64 {s2(S_NE2)}, {s2(S_NE)}")
    A(f"s_bitset1_b64 {s2(S_NE2)}, 63")
    A(f"s_ff1_i32_b64 s{S_NN}, {s2(S_NE2)}")
    A(f"v_readlane_b32 s{S_DEL}, v{V_DEL}, s{S_CNODE}")
    A(f"v_readlane_b32 s{S_NST}, v{V_BQ}, s{S_NN}")
    A(f"v_lshrrev_b32 v{VLQ}, 2, v{V_LANE}")
    A(f"s_lshl_b32 s4, s{S_Q}, 4")
    A(f"v_lshl_add_u32 v{VP4}, v{V_LANE}, 2, s4")
    A(f"s_mov_b32 s{S_QR}, s{S_Q}")
    mapn = [0]
    def mapread():
        t = mapn[0]; mapn[0] += 1
        A(f"v_add_u32 v{VDL}, s{S_DEL}, v{VP4}")
        A(f"s_sub_u32 s4, s{S_NST}, s{S_QR}")
        A("s_cmp_ge_u32 s4, 16")
        A(f"s_cbranch_scc1 K2_MD{t}")
        L(f"K2_ML{t}")
        A(f"v_readlane_b32 s{S_DEL}, v{V_DEL}, s{S_NN}")
        A(f"s_bitset0_b64 {s2(S_NE2)}, s{S_NN}")
        A(f"s_ff1_i32_b64 s{S_NN}, {s2(S_NE2)}")
        A(f"v_readlane_b32 s{S_NST}, v{V_BQ}, s{S_NN}")
        A(f"v_cmpx_le_u32 vcc, s4, v{VLQ}")
        A(f"v_add_u32 v{VDL}, s{S_DEL}, v{VP4}")
        A("s_mov_b64 exec, -1")
        A(f"s_sub_u32 s4, s{S_NST}, s{S_QR}")
        A("s_cmp_lt_u32 s4, 16")
        A(f"s_cbranch_scc1 K2_ML{t}")
        L(f"K2_MD{t}")
        A(f"ds_read_b32 v{VREC}, v{VDL}")
        A(f"s_add_u32 s{S_QR}, s{S_QR}, 16")
    def powers():
        A(f"ds_write_b32 v{VP4}, v{VREC} offset:{SI}")
        A(f"v_and_b32 v{VT+1}, 0xffff0000, v{VREC}")
        A(f"v_mul_f32 v{VT+1}, s{S_ESC}, v{VT+1}")
        A(f"v_mul_f32 v{VT+2}, v{VT+1}, v{VT+1}")
        A(f"v_cmp_ge_f32 vcc, s{S_THR}, v{VT+2}")
        A(f"v_cvt_pkrtz_f16_f32 v{VT}, v{VT+1}, v{VT+2}")
        A(f"v_lshlrev_b32 v{VDL}, 2, v{VP4}")
        A(f"v_add_u32 v{VP4}, 0x100, v{VP4}")
        A(f"v_cndmask_b32 v{VT}, -1, v{VT}, vcc")
        for j in range(3):
            A(f"v_pk_mul_f16 v{VT+j+1}, v{VT+j}, v{VT} op_sel:[0,1] op_sel_hi:[1,1]")
        A(f"ds_write_b128 v{VDL}, {v(VT,4)} offset:{PW}")
    mapread()
    A(f"v_lshrrev_b32 v{VG4}, 4, v{V_LANE}")
    A(f"v_and_b32 v{VT}, 3, v{V_LANE}")
    A(f"v_cmp_eq_u32 vcc, v{VT}, v{VG4}")
    A(f"v_mov_b32 v{VT+1}, 512")
    A(f"v_bfe_u32 v{VT}, v{V_LANE}, 2, 2")
    A(f"v_cndmask_b32 v{VINC}, 0, v{VT+1}, vcc")
    A(f"s_lshl_b32 s4, s{S_Q}, 6")
    A(f"s_add_u32 s4, s4, {PW}")
    A(f"v_lshl_add_u32 v{VT}, v{VT}, 4, s4")
    A(f"v_mov_b32 v{VT+1}, {ZR}")
    A(f"v_cndmask_b32 v{VRA}, v{VT+1}, v{VT}, vcc")
    A(f"v_lshlrev_b32 v{VG4}, 2, v{VG4}")
    A(f"s_lshl_b32 s4, s{S_Q}, 4")
    A(f"s_add_u32 s4, s4, {SI}")
    A(f"v_add_u32 v{VRI}, s4, v{VG4}")
    for k in range(4):
        A(f"v_mov_b32 v{IX+2*k+1}, v{V_LOFF}")
    A(f"s_mov_b32 s{S_PAR}, 0")
    A(f"v_readlane_b32 s{S_END}, v{V_END}, s{S_CNODE}")
    A(f"v_readlane_b32 s5, v{V_BQ}, s{S_CNODE}")
    A(f"s_mul_i32 s4, s{S_CNODE}, {RS_}")
    A(f"v_add_u32 v{VNX}, s4, v{V_LOFF}")
    A(f"v_add_u32 v{VDST}, v{VNX}, v{VG4}")
    A(f"v_mov_b32 v{VPN}, v{VDST}")
    A(f"s_cmp_lt_u32 s5, s{S_Q}")
    A("s_cbranch_scc0 K2_NOSHARE")
    A(f"s_lshl_b32 s4, s{S_WAVE}, 8")
    A(f"s_add_u32 s4, s4, {SP}")
    A(f"v_add3_u32 v{VDST}, v{V_LOFF}, v{VG4}, s4")
    A(f"v_mov_b32 v{VU+1}, s{S_CNODE}")
    A(f"v_mov_b32 v{VPN}, {ZR}")
    A(f"ds_write_b32 v{VU}, v{VU+1} offset:{SPN}")
    L("K2_NOSHARE")
    A(f"ds_read_b32 v{VPREV}, v{VPN}")
    A(f"ds_read_b128 {v(VIA,4)}, v{VNX} offset:{IA}")
    A(f"s_min_u32 s{S_REM}, s{S_END}, s{S_Q1}")
    A(f"s_sub_u32 s{S_REM}, s{S_REM}, s{S_Q}")
    A(f"s_mov_b32 s{S_RUN}, s{S_Q}")
    A(f"s_mov_b32 s{S_BIG}, 0x{f32bits(2.0**118):x}")
    A("s_waitcnt lgkmcnt(2)")
    A(f"ds_write_b32 v{VP4}, v{VREC} offset:{SI}")
    for k in range(4):
        A(f"ds_read_u16 v{IX+2*k}, v{VRI} offset:{16*k}")
    n0 = len(out)
    powers()
    del out[n0]
    tail = out[n0:]; del out[n0:]
    out.extend(tail[:5])
    for k in range(3):
        A(f"s_waitcnt lgkmcnt({3-k})")
        A(f"buffer_load_dwordx4 {v(DS+4*k,4)}, {v(IX+2*k,2)}, {s4(SRD_T)}, 0 idxen offen")
    out.extend(tail[5:])
    for k in range(3):
        A(f"ds_read_b128 {v(AR+4*k,4)}, v{VRA} offset:{64*k}")
    for k in range(4, 6):
        A(f"ds_read_u16 v{IX+2*(k%4)}, v{VRI} offset:{16*k}")
    mapread()
    for i in range(4):
        A(f"v_mov_b32 v{VN+i}, 0")
        A(f"v_mov_b32 v{VD+i}, 1.0")
        A(f"v_mov_b32 v{VACC+i}, 0")
    A("s_waitcnt lgkmcnt(5)")
    A(f"v_mfma_f32_16x16x32_f16 {v(PR,4)}, {v(AR,4)}, {v(V_B,4)}, 1.0")
    A("s_waitcnt lgkmcnt(0)")
    stamp(4)
    PRIO = not flag("noprio")
    if PRIO: A("s_setprio 3")
    L("K2_LOOP")
    for k in range(8):
        d3 = DS + 4*((k+3) % 4); d0 = DS + 4*(k % 4)
        pc = PR + 4*(k % 2); pn = PR + 4*((k+1) % 2)
        A(f"ds_read_u16 v{IX+2*((k+2)%4)}, v{VRI} offset:{16*(k+6)}")
        A(f"ds_read_b128 {v(AR+4*((k+3)%4),4)}, v{VRA} offset:{64*(k+3)}")
        A("s_waitcnt lgkmcnt(4)")
        A(f"buffer_load_dwordx4 {v(d3,4)}, {v(IX+2*((k+3)%4),2)}, {s4(SRD_T)}, 0 idxen offen")
        A(f"v_mfma_f32_16x16x32_f16 {v(pn,4)}, {v(AR+4*((k+1)%4),4)}, {v(V_B,4)}, 1.0")
        A("s_waitcnt vmcnt(3)")
        A(f"v_lshlrev_b64 {v(VH,2)}, 16, {v(d0,2)}")
        A(f"v_lshlrev_b64 {v(VH+2,2)}, 16, {v(d0+2,2)}")
        for j in (0, 2):
            A(f"v_pk_fma_f32 {v(VS+j,2)}, {v(d0+j,2)}, {v(pc+j,2)}, {v(VIA+j,2)}")
        for j in (0, 2):
            A(f"v_pk_mul_f32 {v(VU+j,2)}, {v(VH+j,2)}, {v(VD+j,2)}")
        for j in (0, 2):
            A(f"v_pk_fma_f32 {v(VN+j,2)}, {v(VN+j,2)}, {v(VS+j,2)}, {v(VU+j,2)}")
            A(f"v_pk_mul_f32 {v(VD+j,2)}, {v(VD+j,2)}, {v(VS+j,2)}")
        A(f"s_cmp_eq_u32 s{S_REM}, {k+1}")
        A(f"s_cbranch_scc1 K2_FL{k}")
        L(f"K2_BK{k}")
    A(f"v_add_u32 v{VRI}, 128, v{VRI}")
    A(f"v_add_u32 v{VRA}, v{VINC}, v{VRA}")
    A(f"s_add_u32 s{S_Q}, s{S_Q}, 8")
    A(f"s_sub_u32 s{S_REM}, s{S_REM}, 8")
    A(f"s_xor_b32 s{S_PAR}, s{S_PAR}, 1")
    A("s_cbranch_scc0 K2_NOPW")
    powers()
    mapread()
    L("K2_NOPW")
    if PRIO:
        TH = [int(x) for x in opt("prth", "24,16,8").split(",")]
        A(f"s_sub_u32 s3, s{S_Q1}, s{S_Q}")
        A(f"s_cmp_gt_i32 s3, {TH[0]}")
        A("s_cbranch_scc1 K2_PRX")
        A("s_setprio 2")
        A(f"s_cmp_gt_i32 s3, {TH[1]}")
        A("s_cbranch_scc1 K2_PRX")
        A("s_setprio 1")
        A(f"s_cmp_gt_i32 s3, {TH[2]}")
        A("s_cbranch_scc1 K2_PRX")
        A("s_setprio 0")
        L("K2_PRX")
    A(f"s_sub_u32 s3, s{S_Q}, s{S_RUN}")
    A("s_cmp_lt_u32 s3, 16")
    A("s_cbranch_scc1 K2_LOOP")
    def resolve(tag):
        for j in (0, 2):
            A(f"v_pk_mul_f32 {v(VN+j,2)}, {v(VN+j,2)}, {v(VIA+j,2)}")
        A(f"v_pk_add_f32 {v(VH,2)}, {v(VD,2)}, {v(VD+2,2)}")
        for j in (0, 2):
            A(f"v_pk_mul_f32 {v(VU+j,2)}, {v(VN+j,2)}, {v(VT+j,2)}")
        A(f"v_pk_fma_f32 {v(VH,2)}, {v(VU,2)}, 0, {v(VH,2)} op_sel_hi:[1,0,1]")
        A(f"v_pk_fma_f32 {v(VH,2)}, {v(VU+2,2)}, 0, {v(VH,2)} op_sel_hi:[1,0,1]")
        A(f"v_add_f32 v{VH}, v{VH}, v{VH+1}")
        A(f"v_cmp_ngt_f32 vcc, s{S_BIG}, v{VH}")
        A(f"s_cbranch_vccz K2_FOK{tag}")
        A(f"s_call_b64 {s2(S_RET2)}, K2_SLOW")
        L(f"K2_FOK{tag}")
        for j in (0, 2):
            A(f"v_pk_add_f32 {v(VACC+j,2)}, {v(VACC+j,2)}, {v(VU+j,2)}")
    for i in range(4):
        A(f"v_rcp_f32 v{VT+i}, v{VD+i}")
    A(f"s_sub_u32 s{S_QB}, s{S_Q}, 1")
    resolve("R")
    for i in range(4):
        A(f"v_mov_b32 v{VN+i}, 0")
        A(f"v_mov_b32 v{VD+i}, 1.0")
    A(f"s_mov_b32 s{S_RUN}, s{S_Q}")
    A("s_branch K2_LOOP")
    for k in range(8):
        L(f"K2_FL{k}")
        A(f"s_call_b64 {s2(S_RET)}, K2_FLUSH")
        A(f"s_cbranch_scc0 K2_BK{k}")
        A(f"s_branch K2_MAINDONE")
    L("K2_FLUSH")
    for i in range(4):
        A(f"v_rcp_f32 v{VT+i}, v{VD+i}")
    A(f"s_ff1_i32_b64 s{S_NODE}, {s2(S_NE)}")
    A(f"s_max_i32 s{S_NODE}, s{S_NODE}, 0")
    A(f"s_bitset0_b64 {s2(S_NE)}, s{S_NODE}")
    A(f"s_mul_i32 s8, s{S_NODE}, {RS_}")
    A(f"v_add_u32 v{VNX}, s8, v{V_LOFF}")
    A(f"ds_read_b128 {v(VIAN,4)}, v{VNX} offset:{IA}")
    A(f"v_add_u32 v{VNX}, v{VNX}, v{VG4}")
    A(f"ds_read_b32 v{VPN}, v{VNX}")
    A(f"v_readlane_b32 s{S_END}, v{V_END}, s{S_NODE}")
    A(f"s_add_u32 s{S_QB}, s{S_Q}, s{S_REM}")
    A(f"s_sub_u32 s{S_QB}, s{S_QB}, 1")
    resolve("F")
    A(f"v_mov_b32 v{VN}, 0")
    A(f"v_mov_b32 v{VN+1}, 0")
    A(f"v_permlane32_swap_b32 v{VACC}, v{VACC+2}")
    A(f"v_permlane32_swap_b32 v{VACC+1}, v{VACC+3}")
    A(f"v_mov_b32 v{VN+2}, 0")
    A(f"v_pk_add_f32 {v(VU,2)}, {v(VACC,2)}, {v(VACC+2,2)}")
    A(f"v_mov_b32 v{VN+3}, 0")
    A(f"v_mov_b32 v{VD}, 1.0")
    A(f"v_permlane16_swap_b32 v{VU}, v{VU+1}")
    A(f"v_mov_b32 v{VD+1}, 1.0")
    A(f"v_add_f32 v{VU}, v{VU}, v{VU+1}")
    A(f"v_add_f32 v{VU}, v{VU}, v{VPREV}")
    A(f"ds_write_b32 v{VDST}, v{VU}")
    A(f"s_add_u32 s{S_RUN}, s{S_QB}, 1")
    A(f"s_min_u32 s{S_REM}, s{S_END}, s{S_Q1}")
    A(f"s_sub_u32 s{S_REM}, s{S_REM}, s{S_Q}")
    A(f"s_mov_b32 s{S_CNODE}, s{S_NODE}")
    A(f"v_mov_b32 v{VDST}, v{VNX}")
    A(f"v_mov_b32 v{VD+2}, 1.0")
    A(f"v_mov_b32 v{VD+3}, 1.0")
    for i in range(4):
        A(f"v_mov_b32 v{VACC+i}, 0")
    A("s_waitcnt lgkmcnt(1)")
    for i in range(4):
        A(f"v_mov_b32 v{VIA+i}, v{VIAN+i}")
    A(f"v_mov_b32 v{VPREV}, v{VPN}")
    A(f"s_cmp_eq_u32 s{S_RUN}, s{S_Q1}")
    A(f"s_setpc_b64 {s2(S_RET)}")
    L("K2_SLOW")
    if DBG: A("s_add_u32 s93, s93, 1")
    for i in range(4):
        A(f"v_mov_b32 v{VU+i}, 0")
    A(f"s_mov_b32 s{S_I}, s{S_RUN}")
    A(f"s_mov_b32 s15, 0x{NEGL:x}")
    A(f"v_lshrrev_b32 v{SL+4}, 1, v{V_LOFF}")
    L("K2_SLOWL")
    A(f"s_lshl_b32 s12, s{S_I}, 4")
    A(f"s_add_u32 s12, s12, {SI}")
    A(f"v_add_u32 v{SL}, s12, v{VG4}")
    A(f"ds_read_b32 v{SL+2}, v{SL}")
    A("s_movk_i32 s12, 0x4000")
    A(f"buffer_load_dwordx2 {v(VN,2)}, v{SL+4}, {s4(SRD_G)}, s12 offen")
    A(f"v_mov_b32 v{SL+1}, v{V_LOFF}")
    A("s_waitcnt lgkmcnt(0)")
    A(f"v_and_b32 v{SL}, 0xffff, v{SL+2}")
    A(f"buffer_load_dwordx4 {v(VT,4)}, {v(SL,2)}, {s4(SRD_T)}, 0 idxen offen")
    A(f"v_and_b32 v{SL+3}, 0xffff0000, v{SL+2}")
    A(f"v_lshlrev_b32 v{SL+5}, 7, v{SL}")
    A("s_waitcnt vmcnt(0)")
    A(f"v_lshlrev_b32 v{VS}, 16, v{VN}")
    A(f"v_and_b32 v{VS+1}, 0xffff0000, v{VN}")
    A(f"v_lshlrev_b32 v{VS+2}, 16, v{VN+1}")
    A(f"v_and_b32 v{VS+3}, 0xffff0000, v{VN+1}")
    for i in range(4):
        A(f"v_mul_f32 v{VS+i}, v{VS+i}, v{SL+3}")
    A(f"v_lshlrev_b64 {v(VH,2)}, 16, {v(VT,2)}")
    A(f"v_lshlrev_b64 {v(VH+2,2)}, 16, {v(VT+2,2)}")
    A("s_mov_b32 s13, 0")
    L("K2_SLOWK")
    A(f"buffer_load_dwordx2 {v(SL+2,2)}, v{SL+5}, {s4(SRD_X)}, s13 offen")
    A("s_lshl_b32 s14, s13, 6")
    A("s_add_u32 s14, s14, 0x2000")
    for j in range(4):
        A(f"buffer_load_dwordx2 {v(VN+2*j,2)}, v{SL+4}, {s4(SRD_G)}, s14 offen offset:{128*j}")
    A("s_waitcnt vmcnt(0)")
    for j in range(4):
        src = SL + 2 + (j >> 1)
        if j & 1: A(f"v_and_b32 v{VT}, 0xffff0000, v{src}")
        else: A(f"v_lshlrev_b32 v{VT}, 16, v{src}")
        for i in range(4):
            w = VN + 2*j + (i >> 1)
            if i & 1: A(f"v_and_b32 v{VT+1}, 0xffff0000, v{w}")
            else: A(f"v_lshlrev_b32 v{VT+1}, 16, v{w}")
            A(f"v_fma_f32 v{VS+i}, v{VT}, v{VT+1}, v{VS+i}")
    A("s_add_u32 s13, s13, 8")
    A("s_cmp_lt_u32 s13, 128")
    A("s_cbranch_scc1 K2_SLOWK")
    A(f"s_mul_i32 s12, s{S_CNODE}, {RS_}")
    A(f"v_add_u32 v{SL+2}, s12, v{V_LOFF}")
    A(f"ds_read_b128 {v(VT,4)}, v{SL+2} offset:{XAL}")
    A("s_waitcnt lgkmcnt(0)")
    for i in range(4):
        A(f"v_fma_f32 v{VS+i}, v{VS+i}, s15, v{VT+i}")
    for i in range(4):
        A(f"v_exp_f32 v{VS+i}, v{VS+i}")
    A("s_nop 0")
    for i in range(4):
        A(f"v_add_f32 v{VS+i}, 1.0, v{VS+i}")
    for i in range(4):
        A(f"v_rcp_f32 v{VS+i}, v{VS+i}")
    A("s_nop 0")
    for i in range(4):
        A(f"v_fma_f32 v{VU+i}, v{VH+i}, v{VS+i}, v{VU+i}")
    A(f"s_add_u32 s{S_I}, s{S_I}, 1")
    A(f"s_cmp_le_u32 s{S_I}, s{S_QB}")
    A("s_cbranch_scc1 K2_SLOWL")
    A(f"s_setpc_b64 {s2(S_RET2)}")
    L("K2_GENERAL")
    A(f"s_mov_b32 s{S_MODE}, 1")
    A(f"s_mov_b32 s{S_W}, -1")
    A("s_branch K2_NEXTWIN")
    L("K2_MAINDONE")
    if PRIO: A("s_setprio 0")
    A("s_waitcnt lgkmcnt(0)")
    stamp(5)
    A("s_barrier")
    stamp(6)
    A(f"s_cmp_gt_u32 s{S_WAVE}, 12")
    A("s_cbranch_scc1 K2_NOACC")
    A(f"ds_read_b128 v[24:27], v{V_PADDR} offset:{AGG}")
    A(f"v_lshrrev_b32 v28, 2, v{V_LOFF}")
    A(f"ds_read_b32 v29, v28 offset:{SPN}")
    A(f"v_lshrrev_b32 v31, 4, v0")
    A("s_waitcnt lgkmcnt(0)")
    A("v_lshrrev_b32 v30, 2, v29")
    A(f"v_cmp_eq_u32 vcc, s{S_WAVE}, v30")
    A("s_and_b32 s8, vcc_lo, 0xffff")
    A("s_cbranch_scc0 K2_NOSP")
    L("K2_SPL")
    A("s_ff1_i32_b32 s9, s8")
    A("s_bitset0_b32 s8, s9")
    A("v_readlane_b32 s10, v29, s9")
    A("s_lshl_b32 s9, s9, 8")
    A(f"s_add_u32 s9, s9, {SP}")
    A(f"v_add_u32 v30, s9, v{V_LOFF}")
    A(f"ds_read_b128 v[32:35], v30")
    A("v_cmp_eq_u32 vcc, s10, v31")
    A("s_waitcnt lgkmcnt(0)")
    A("s_mov_b64 exec, vcc")
    A(f"v_pk_add_f32 v[24:25], v[24:25], v[32:33]")
    A(f"v_pk_add_f32 v[26:27], v[26:27], v[34:35]")
    A("s_mov_b64 exec, -1")
    A("s_cmp_lg_u32 s8, 0")
    A("s_cbranch_scc1 K2_SPL")
    L("K2_NOSP")
    A(f"s_cmp_eq_u32 s{S_MODE}, 0")
    A("s_cbranch_scc1 K2_EPI")
    A(f"ds_write_b128 v{V_PADDR}, v[24:27] offset:{AGG}")
    A("s_waitcnt lgkmcnt(0)")
    L("K2_NOACC")
    A(f"s_cmp_eq_u32 s{S_MODE}, 0")
    A("s_cbranch_scc1 K2_END")
    L("K2_NEXTWIN")
    A(f"s_add_u32 s{S_W}, s{S_W}, 1")
    A(f"s_cmp_ge_u32 s{S_W}, {2*NCH}")
    A("s_cbranch_scc1 K2_LASTWIN")
    A(f"s_lshr_b32 s9, s{S_W}, 1")
    A(f"s_and_b32 s10, s{S_W}, 1")
    A(f"s_lshl_b32 s4, s9, {OGL+2}")
    A("v_mov_b32 v22, s4")
    A(f"buffer_load_dword v{V_OFF}, v22, {s4(SRD_A)}, s{S_OFFB} offen")
    A("s_mul_i32 s11, s10, 3072")
    A("s_lshl_b32 s10, s10, 10")
    A("s_waitcnt vmcnt(0)")
    A(f"v_readfirstlane_b32 s4, v{V_OFF}")
    A("s_and_b32 s5, s4, 0xffff")
    A("s_cmp_le_u32 s5, s11")
    A("s_cbranch_scc1 K2_NEXTWIN")
    A("s_sub_u32 s5, s5, s11")
    A("s_lshr_b32 s4, s4, 16")
    A(f"s_mul_i32 s8, s9, {CS//16}")
    A("s_add_u32 s4, s4, s8")
    A("s_add_u32 s4, s4, s10")
    A(f"v_add_lshl_u32 v{V_RADDR}, s4, v0, 4")
    A("v_mul_u32_u24 v22, 3, v0")
    A("v_sub_u32 v23, s5, v22 clamp")
    A("v_mov_b32 v51, 0.5")
    for j in range(3):
        A(f"v_cmp_lt_u32 {s2(S_M+2*j)}, {j}, v23")
    A(f"v_cndmask_b32 v{V_A}, v51, v{V_RADDR}, {s2(S_M)}")
    A(f"buffer_load_dwordx4 {v(V_R,4)}, v{V_A}, {s4(SRD_REC)}, 0 offen")
    A("s_barrier")
    A(f"v_lshlrev_b32 v52, 2, v{V_LANE}")
    A("v_mov_b32 v53, 0")
    A(f"ds_write_b32 v52, v53 offset:{CNT}")
    A("s_waitcnt vmcnt(0) lgkmcnt(0)")
    A("s_barrier")
    for k in range(3):
        r, j = divmod(k, 3)
        nodebyte(V_LA+k, V_R+4*r+3, j)
    for k in range(3):
        A(f"s_mov_b64 exec, {s2(S_M+2*k)}")
        A(f"ds_add_rtn_u32 v{56+k}, v{V_LA+k}, v{V_FOUR} offset:{CNT}")
    A("s_mov_b64 exec, -1")
    A("s_waitcnt lgkmcnt(0)")
    A("s_barrier")
    A(f"ds_read_b32 v53, v52 offset:{CNT}")
    A("s_waitcnt lgkmcnt(0)")
    A("v_add_u32 v54, 12, v53")
    A("v_lshrrev_b32 v54, 4, v54")
    A(f"v_mov_b32 v{V_END}, v54")
    scan64(V_END)
    A(f"v_cmp_ne_u32 s[10:11], 0, v54")
    A(f"v_mov_b32 v{V_DEL}, {SLOT}")
    A(f"v_readlane_b32 s12, v{V_END}, 63")
    A(f"v_sub_u32 v{V_BQ}, v{V_END}, v54")
    A(f"v_lshl_add_u32 v55, v{V_BQ}, 4, v{V_DEL}")
    for k in range(3):
        A(f"ds_bpermute_b32 v{64+k}, v{V_LA+k}, v55")
    A(f"v_mov_b32 v62, 0x{DUMMY:x}")
    A("v_add_u32 v63, v55, v53")
    A("v_lshlrev_b32 v54, 4, v54")
    A("v_sub_u32 v54, v54, v53")
    A("s_waitcnt lgkmcnt(0)")
    for k in range(3):
        r, j = divmod(k, 3)
        A(f"s_mov_b64 exec, {s2(S_M+2*k)}")
        A(f"v_add_u32 v{64+k}, v{64+k}, v{56+k}")
        A(f"ds_write_b32 v{64+k}, v{V_R+4*r+j}")
    A("s_mov_b64 exec, -1")
    for j in range(3):
        A(f"v_cmpx_lt_u32 vcc, {4*j}, v54")
        A(f"ds_write_b32 v63, v62 offset:{4*j}")
    A("s_mov_b64 exec, -1")
    A(f"s_mov_b64 {s2(S_NE)}, s[10:11]")
    A("s_waitcnt lgkmcnt(0)")
    A("s_barrier")
    A("s_branch K2_SETUP")
    L("K2_LASTWIN")
    A(f"s_cmp_gt_u32 s{S_WAVE}, 12")
    A("s_cbranch_scc1 K2_END")
    A(f"ds_read_b128 v[24:27], v{V_PADDR} offset:{AGG}")
    L("K2_EPI")
    srd(SRD_A, OUT_, OUT_+1, N*128)
    A(f"s_mov_b32 s4, 0x{NEGL:x}")
    A(f"s_mul_i32 s5, s2, {BN*128}")
    A("v_lshlrev_b32 v32, 3, v0")
    A(f"v_cmp_gt_u32 vcc, {BN*16}, v0")
    A("s_waitcnt lgkmcnt(0)")
    for i in range(4):
        A(f"v_mul_f32 v{28+i}, s4, v{24+i}")
    for i in range(4):
        A(f"v_exp_f32 v{28+i}, v{28+i}")
    A("s_nop 0")
    for i in range(4):
        A(f"v_add_f32 v{28+i}, 1.0, v{28+i}")
    for i in range(4):
        A(f"v_rcp_f32 v{28+i}, v{28+i}")
    A("s_nop 0")
    for i in range(4):
        A(f"v_mul_f32 v{28+i}, v{24+i}, v{28+i}")
    A("v_cvt_pk_bf16_f32 v24, v28, v29")
    A("v_cvt_pk_bf16_f32 v25, v30, v31")
    A("s_mov_b64 exec, vcc")
    OSC = " " + opt("osc", "none").replace("+", " ").replace("none", "")
    if not flag("xnost"): A(f"buffer_store_dwordx2 v[24:25], v32, {s4(SRD_A)}, s5 offen{OSC}")
    if DBG and flag("endwait"): A("s_waitcnt vmcnt(0)")
    rstamp(9)
    dbg_dump(10, S_WAVE, "K2_DBGX", 17, 4, 0, 2, 1)
    L("K2_END")
    A("s_endpgm")

def desc(name, nv, ns=102):
    acc = (nv + 3) // 4 * 4
    return f""".p2align 6
.amdhsa_kernel {name}
  .amdhsa_next_free_vgpr {nv}
  .amdhsa_next_free_sgpr {ns}
  .amdhsa_accum_offset {acc}
  .amdhsa_group_segment_fixed_size 0
  .amdhsa_kernarg_size 80
  .amdhsa_user_sgpr_count 2
  .amdhsa_user_sgpr_kernarg_segment_ptr 1
  .amdhsa_system_sgpr_workgroup_id_x 1
.end_amdhsa_kernel
"""

hdr = f"""; EGC message passing: k1 = edge binning + source-node table, k2 = per-bucket gather/accumulate
; @launch kernel=k1_kernel grid=({NCH+NG+1},1,1) block=({B1},1,1) lds={K1_LDS}
; @launch kernel=k2_kernel grid=({NB},1,1) block=(1024,1,1) lds={K2_LDS}
.amdgcn_target "amdgcn-amd-amdhsa--gfx950"
.text
"""
k1()
k2()
K3 = flag("k3")
if K3:
    out.append(".globl k3_kernel"); out.append(".p2align 8"); out.append(".type k3_kernel,@function")
    L("k3_kernel")
    A("s_cmp_ge_u32 s2, 8")
    A("s_cbranch_scc1 K3_END")
    rstamp(8)
    A("s_load_dwordx2 s[32:33], s[0:1], 72")
    A("s_mov_b32 s7, 0")
    A("s_waitcnt lgkmcnt(0)")
    rstamp(9)
    dbg_dump(10, 7, "K3_DBGX", 500, 4, 0, 2, 2)
    L("K3_END")
    A("s_endpgm")
    hdr = hdr.replace(".amdgcn_target", "; @launch kernel=k3_kernel grid=(8,1,1) block=(64,1,1) lds=0\n.amdgcn_target")
txt = hdr + "\n".join(out) + "\n" + '.section .rodata,"a"\n' + desc("k1_kernel", 112) + desc("k2_kernel", 128) + (desc("k3_kernel", 16) if K3 else "")
dst = sys.argv[1] if len(sys.argv) > 1 and not sys.argv[1].startswith("--") else "gather_scatter__edge_featured_mpnn_egc__graph.s"
open(dst, "w").write(txt)
print("wrote", dst, len(txt))
```

```python
import sys, struct, math

def opt0(name, default):
    r = [a[len(name)+3:] for a in sys.argv if a.startswith("--" + name + "=")]
    return r[0] if r else default
N = 12500; E = 800000
NB = 256; BN = 49
CH = 5000; NCH = 160
NG = 79
B1 = 640
T_OFF = 0; REC_OFF = 8 << 20; OFF_OFF = 16 << 20; FR_OFF = 17 << 20
OG = int(opt0("og", "32")); OGL = OG.bit_length() - 1
OFF_GS = 256*OG*4
CS = 29440
FR_B = 16384; FR_S = 17408; FR_SIZE = 17408 + 512
LOG2E = math.log2(math.e)
def f32bits(x): return struct.unpack("<I", struct.pack("<f", x))[0]
NEGL = f32bits(-LOG2E)
KLOG = 2.0
POLY = [1.0/math.factorial(k) for k in range(1, 9)]
def opt(name, default):
    r = [a[len(name)+3:] for a in sys.argv if a.startswith("--" + name + "=")]
    return r[0] if r else default
def flag(name): return ("--" + name) in sys.argv

out = []
def A(s): out.append("    " + s)
def L(s): out.append(s + ":")

def srd(r, lo, hi, nrec, add=0):
    if add:
        A(f"s_add_u32 s{r}, s{lo}, 0x{add:x}")
        A(f"s_addc_u32 s{r+1}, s{hi}, 0")
        A(f"s_and_b32 s{r+1}, s{r+1}, 0xffff")
    else:
        A(f"s_mov_b32 s{r}, s{lo}")
        A(f"s_and_b32 s{r+1}, s{hi}, 0xffff")
    A(f"s_mov_b32 s{r+2}, 0x{nrec:x}")
    A(f"s_mov_b32 s{r+3}, 0x20000")

def v(r, n=1):
    return f"v{r}" if n == 1 else f"v[{r}:{r+n-1}]"
def s4(r): return f"s[{r}:{r+3}]"
def s2(r): return f"s[{r}:{r+1}]"

def scan64(x, op="v_add_u32_dpp"):
    for sh in (1, 2, 4, 8):
        A("s_nop 1")
        A(f"{op} v{x}, v{x}, v{x} row_shr:{sh} row_mask:0xf bank_mask:0xf")
    A("s_nop 1")
    A(f"{op} v{x}, v{x}, v{x} row_bcast:15 row_mask:0xa bank_mask:0xf")
    A("s_nop 1")
    A(f"{op} v{x}, v{x}, v{x} row_bcast:31 row_mask:0xc bank_mask:0xf")

DBG = flag("dbg")
def stamp(idx):
    if DBG:
        A("s_memtime s[98:99]")
        A("s_waitcnt lgkmcnt(0)")
        A(f"s_mov_b32 s{86+idx}, s98")
def rstamp(idx):
    if DBG:
        A("s_memrealtime s[98:99]")
        A("s_waitcnt lgkmcnt(0)")
        A(f"s_mov_b32 s{86+idx}, s98")
def dbg_dump(nst, wave_sgpr, lab, wg=0, nw=4, slot0=0, wsh=0, kidx=0):
    if DBG:
        A(f"s_cmp_lg_u32 s{wave_sgpr}, 0")
        A(f"s_cbranch_scc1 {lab}W")
        srd(96, WS_, WS_+1, 1 << 20, (18 << 20) + kidx*65536)
        A("s_getreg_b32 s3, hwreg(HW_REG_XCC_ID)")
        A("s_mov_b64 exec, 1")
        A("v_mov_b32 v4, s3")
        A("s_getreg_b32 s3, hwreg(HW_REG_HW_ID)")
        A("v_mov_b32 v5, s3")
        A("s_lshl_b32 s3, s2, 4")
        A("v_mov_b32 v1, s3")
        A("v_mov_b32 v2, s94")
        A("v_mov_b32 v3, s95")
        A("buffer_store_dwordx4 v[2:5], v1, s[96:99], 0 offen")
        if flag("odbg"):
            A("s_load_dwordx2 s[98:99], s[0:1], 64")
            A("s_waitcnt lgkmcnt(0)")
            if kidx == 0:
                A(f"s_add_u32 s98, s98, 512")
                A("s_addc_u32 s99, s99, 0")
            srd(96, 98, 99, 256)
            A("v_not_b32 v2, s94")
            A("v_mov_b32 v3, s95")
            A(f"buffer_atomic_umax v2, off, s[96:99], 0 offset:{40+8*kidx}")
            A(f"buffer_atomic_umax v3, off, s[96:99], 0 offset:{44+8*kidx}")
            if kidx == 0:
                A("s_cmp_lg_u32 s2, 117")
                A(f"s_cbranch_scc1 {lab}W")
                A("s_sub_u32 s3, s87, s86")
                A("v_mov_b32 v2, s3")
                A("s_sub_u32 s3, s92, s86")
                A("v_mov_b32 v3, s3")
                A("buffer_store_dwordx2 v[2:3], off, s[96:99], 0 offset:56")
        L(lab + "W")
        A(f"s_cmp_lg_u32 s2, {wg}")
        A(f"s_cbranch_scc1 {lab}")
        A(f"s_and_b32 s3, s{wave_sgpr}, {(1<<wsh)-1}")
        A(f"s_cmp_lg_u32 s3, {(1<<wsh)-1}")
        A(f"s_cbranch_scc1 {lab}")
        A(f"s_lshr_b32 s3, s{wave_sgpr}, {wsh}")
        A(f"s_cmp_ge_u32 s3, {nw}")
        A(f"s_cbranch_scc1 {lab}")
        A("s_load_dwordx2 s[98:99], s[0:1], 64")
        A("s_waitcnt lgkmcnt(0)")
        srd(100-4, 98, 99, 256)
        A("s_mov_b64 exec, 1")
        A(f"s_mul_i32 s3, s3, 64")
        A("v_mov_b32 v1, s3")
        for i in range(nst):
            A(f"v_mov_b32 v2, s{86+i}")
            A(f"buffer_store_dword v2, v1, s[96:99], 0 offen offset:{4*i+64*slot0}")
        L(lab)
X_, E_, SRC_, DST_, U_, V_, G_, OUT_, WS_ = 16, 18, 20, 22, 24, 26, 28, 30, 32

def tr_lane_addr(dst, lane, h, tmp):
    A(f"v_bfe_u32 v{dst}, v{lane}, 2, 2")
    A(f"v_lshl_add_u32 v{dst}, v{h}, 3, v{dst}")
    A(f"v_lshlrev_b32 v{dst}, 7, v{dst}")
    A(f"v_and_b32 v{tmp}, 1, v{lane}")
    A(f"v_lshl_add_u32 v{dst}, v{tmp}, 5, v{dst}")
    A(f"v_bfe_u32 v{tmp}, v{lane}, 4, 1")
    A(f"v_lshl_add_u32 v{dst}, v{tmp}, 4, v{dst}")
    A(f"v_bfe_u32 v{tmp}, v{lane}, 1, 1")
    A(f"v_lshl_add_u32 v{dst}, v{tmp}, 3, v{dst}")

K1_XT = 16384 + 10*4608
K1_LDS = K1_XT + 160*144
SC = " " + opt0("sc", "sc1").replace("+", " ").replace("none", "")
def k1():
    out.append(".globl k1_kernel")
    out.append(".p2align 8")
    out.append(".type k1_kernel,@function")
    L("k1_kernel")
    A(f"s_cmp_gt_u32 s2, {NCH+NG}")
    A("s_cbranch_scc1 K1_END")
    if int(opt("k1delay", "0")): A(f"s_sleep {int(opt('k1delay', '0'))}")
    stamp(0)
    rstamp(8)
    A("s_load_dwordx16 s[16:31], s[0:1], 0")
    A("s_load_dwordx2 s[32:33], s[0:1], 72")
    A("v_lshrrev_b32 v1, 6, v0")
    A("v_lshlrev_b32 v3, 4, v0")
    A("v_readfirstlane_b32 s7, v1")
    A(f"s_cmp_eq_u32 s2, {NCH+NG}")
    A("s_cbranch_scc1 K1_FRAG")
    GF = flag("gemmfirst")
    if GF:
        A(f"s_cmp_lt_u32 s2, {NG}")
        A("s_cbranch_scc1 K1_GEMM")
        A(f"s_sub_u32 s34, s2, {NG}")
    else:
        A(f"s_cmp_ge_u32 s2, {NCH}")
        A("s_cbranch_scc1 K1_GEMM")
        A(f"s_mov_b32 s34, s2")
    HIST, BASE, STAGE = 0, 1024, 2048
    A("v_and_b32 v1, 0xff, v0")
    A("v_lshlrev_b32 v1, 2, v1")
    A("v_mov_b32 v2, 0")
    A("ds_write_b32 v1, v2")
    A("v_lshlrev_b32 v4, 3, v0")
    A(f"s_mul_i32 s3, s34, {CH*4}")
    A(f"s_add_u32 s4, s3, {CH*2}")
    A(f"s_mul_i32 s5, s34, {CH*2}")
    A(f"s_add_u32 s6, s5, {CH}")
    A(f"v_cmp_gt_u32 vcc, {CH//8}, v0")
    A("s_movk_i32 s10, -49")
    A("v_mov_b32 v5, 1")
    A("s_waitcnt lgkmcnt(0)")
    srd(36, DST_, DST_+1, E*4)
    A("s_mov_b64 s[8:9], vcc")
    A("s_mov_b64 exec, vcc")
    A("buffer_load_dwordx4 v[8:11], v3, s[36:39], s3 offen")
    A("buffer_load_dwordx4 v[12:15], v3, s[36:39], s4 offen")
    srd(40, SRC_, SRC_+1, E*4)
    A("buffer_load_dwordx4 v[16:19], v3, s[40:43], s3 offen")
    A("buffer_load_dwordx4 v[20:23], v3, s[40:43], s4 offen")
    srd(44, E_, E_+1, E*2)
    A("buffer_load_dwordx2 v[24:25], v4, s[44:47], s5 offen")
    A("buffer_load_dwordx2 v[26:27], v4, s[44:47], s6 offen")
    srd(48, WS_, WS_+1, NCH*CS, REC_OFF)
    srd(52, WS_, WS_+1, 256*1024, OFF_OFF)
    A("s_barrier")
    stamp(1)
    for half in range(2):
        A(f"s_waitcnt vmcnt({5-half})")
        if half == 0: stamp(2)
        for i in range(4*half, 4*half+4):
            A(f"v_mul_u32_u24 v{28+i}, 5350, v{8+i}")
            A(f"v_lshrrev_b32 v{60+i}, 18, v{28+i}")
            A(f"v_lshlrev_b32 v{28+i}, 2, v{60+i}")
            A(f"ds_add_rtn_u32 v{36+i}, v{28+i}, v5")
            A(f"v_lshlrev_b32 v{8+i}, 2, v{8+i}")
            A(f"v_mad_i32_i24 v{8+i}, v{28+i}, s10, v{8+i}")
    A("s_mov_b32 s11, 0xffff0000")
    A("s_movk_i32 s13, 21846")
    for i in range(8):
        A(f"s_waitcnt lgkmcnt({7-i})")
        A(f"v_mul_u32_u24 v{44+i}, s13, v{36+i}")
        A(f"v_lshrrev_b32 v{44+i}, 16, v{44+i}")
        A(f"v_mad_u32_u24 v{52+i}, v{44+i}, 13, v{36+i}")
        A(f"v_add_u32 v{44+i}, v{44+i}, v{36+i}")
    stamp(3)
    A("s_barrier")
    stamp(4)
    A("s_mov_b64 exec, -1")
    A("v_and_b32 v1, 63, v0")
    A("v_lshlrev_b32 v1, 4, v1")
    A(f"ds_read_b128 v[60:63], v1 offset:{HIST}")
    A("s_waitcnt lgkmcnt(0)")
    for i in range(4):
        A(f"v_add_u32 v{80+i}, 2, v{60+i}")
    for i in range(4):
        A(f"v_mul_u32_u24 v{80+i}, s13, v{80+i}")
    for i in range(4):
        A(f"v_lshrrev_b32 v{80+i}, 16, v{80+i}")
    A("v_add_u32 v65, v80, v81")
    A("v_add_u32 v66, v65, v82")
    A("v_add_u32 v67, v66, v83")
    A("v_mov_b32 v68, v67")
    scan64(68)
    A("s_nop 0")
    A("v_readlane_b32 s14, v68, 63")
    A("v_sub_u32 v68, v68, v67")
    A("v_add_u32 v69, v68, v80")
    A("v_add_u32 v70, v68, v65")
    A("v_add_u32 v71, v68, v66")
    A(f"v_mov_b32 v6, {STAGE}")
    for i in range(4):
        A(f"v_lshl_add_u32 v{72+i}, v{68+i}, 4, v6")
    A(f"ds_write_b128 v1, v[72:75] offset:{BASE}")
    A("s_waitcnt vmcnt(0)")
    A("s_cmp_lg_u32 s7, 9")
    A("s_cbranch_scc1 K1_NOOFF")
    for i in range(4):
        A(f"v_lshl_or_b32 v{76+i}, v{68+i}, 16, v{60+i}")
    A(f"s_lshl_b32 s12, s34, {OGL+2}")
    A(f"v_lshrrev_b32 v2, {OGL+2}, v1")
    A(f"v_and_b32 v80, {OG*4-1}, v1")
    A(f"v_lshl_or_b32 v2, v2, {OGL+10}, v80")
    A(f"buffer_store_dwordx4 v[76:79], v2, s[52:55], s12 offen{SC}")
    L("K1_NOOFF")
    A("s_add_u32 s14, s14, 7")
    A("s_and_b32 s14, s14, -8")
    A("s_lshl_b32 s14, s14, 4")
    A(f"s_sub_u32 s14, s14, {B1*32}")
    A("v_cmp_gt_u32 vcc, s14, v3")
    A("s_waitcnt lgkmcnt(0)")
    A("s_nop 0")
    A("v_cndmask_b32 v7, 0.5, v3, vcc")
    A("s_mov_b64 exec, s[8:9]")
    for i in range(8):
        A(f"ds_read_b32 v{60+i}, v{28+i} offset:{BASE}")
    for i in range(4):
        A(f"v_lshl_or_b32 v{16+2*i}, v{24+i}, 16, v{16+2*i}")
        A(f"v_and_or_b32 v{17+2*i}, v{24+i}, s11, v{17+2*i}")
    for i in range(8):
        A(f"s_waitcnt lgkmcnt({7+i})")
        A(f"v_lshl_add_u32 v{44+i}, v{44+i}, 2, v{60+i}")
        A(f"v_add_u32 v{52+i}, v{52+i}, v{60+i}")
        A(f"ds_write_b32 v{44+i}, v{16+i}")
        A(f"ds_write_b8 v{52+i}, v{8+i} offset:12")
    A(f"s_mul_i32 s12, s34, {CS}")
    A(f"s_add_u32 s13, s12, {B1*16}")
    A(f"s_add_u32 s14, s12, {B1*32}")
    A("s_mov_b64 exec, -1")
    A("s_waitcnt lgkmcnt(0)")
    A("s_barrier")
    stamp(5)
    for k in range(3):
        A(f"ds_read_b128 v[{8+4*k}:{11+4*k}], v3 offset:{STAGE+B1*16*k}")
    for k in range(3):
        A(f"s_waitcnt lgkmcnt({2-k})")
        A(f"buffer_store_dwordx4 v[{8+4*k}:{11+4*k}], v{7 if k == 2 else 3}, s[48:51], s{12+k} offen{SC}")
    if DBG: A("s_waitcnt vmcnt(0)")
    stamp(6)
    rstamp(9)
    dbg_dump(10, 7, "K1_DBGB", 117, 2, 0, 0)
    A("s_endpgm")
    L("K1_GEMM")
    if GF: A(f"s_mov_b32 s3, s2")
    else: A(f"s_sub_u32 s3, s2, {NCH}")
    A("s_cmp_ge_u32 s7, 5")
    A("s_cselect_b32 s6, 1, 0")
    A("s_mul_i32 s4, s6, 5")
    A("s_sub_u32 s4, s7, s4")
    A("v_and_b32 v1, 63, v0")
    A("v_and_b32 v2, 31, v1")
    A("v_lshrrev_b32 v4, 5, v1")
    A("s_mul_i32 s8, s3, 160")
    A("s_lshl_b32 s9, s4, 5")
    A("s_add_u32 s8, s8, s9")
    A("v_add_u32 v2, s9, v2")
    A("v_mul_u32_u24 v5, 144, v2")
    A("v_lshl_add_u32 v5, v4, 4, v5")
    A("v_lshrrev_b32 v107, 3, v0")
    A("v_mul_u32_u24 v107, 144, v107")
    A("v_and_b32 v7, 7, v0")
    A("v_lshl_add_u32 v107, v7, 4, v107")
    A(f"v_add_u32 v107, {K1_XT}, v107")
    A(f"s_mul_i32 s12, s3, {160*128}")
    A(f"s_add_u32 s13, s12, {80*128}")
    A("v_and_b32 v108, 0x1ff0, v3")
    A("s_waitcnt lgkmcnt(0)")
    srd(48, X_, X_+1, N*128)
    A("buffer_load_dwordx4 v[16:19], v3, s[48:51], s12 offen")
    A("buffer_load_dwordx4 v[20:23], v3, s[48:51], s13 offen")
    srd(36, G_, G_+1, 129*128)
    A("s_movk_i32 s10, 0x2000")
    A("buffer_load_dwordx4 v[8:11], v108, s[36:39], s10 offen")
    srd(40, V_, V_+1, 8192)
    A("buffer_load_dwordx4 v[12:15], v108, s[40:43], 0 offen")
    stamp(1)
    srd(52, WS_, WS_+1, N*256, T_OFF)
    tr_lane_addr(6, 1, 4, 7)
    A("s_lshl_b32 s11, s6, 6")
    A("v_add_u32 v6, s11, v6")
    A("s_mul_i32 s11, s7, 4608")
    A("s_add_u32 s11, s11, 16384")
    A("v_and_b32 v104, 31, v1")
    A("v_mul_u32_u24 v104, 144, v104")
    A("v_lshl_add_u32 v104, v4, 6, v104")
    A("v_add_u32 v104, s11, v104")
    A("v_lshrrev_b32 v105, 3, v1")
    A("v_and_b32 v106, 7, v1")
    A("v_lshlrev_b32 v106, 4, v106")
    A("v_add_u32 v2, s8, v105")
    A("v_mul_u32_u24 v105, 144, v105")
    A("v_add3_u32 v105, v105, v106, s11")
    A("v_lshl_add_u32 v2, v2, 8, v106")
    A("s_lshl_b32 s11, s6, 7")
    A("v_add_u32 v2, s11, v2")
    for k in range(2):
        A(f"s_waitcnt vmcnt({3-k})")
        if k == 0: stamp(2)
        A(f"ds_write_b128 v107, v[{16+4*k}:{19+4*k}] offset:{80*144*k}")
    for k in range(2):
        A(f"s_waitcnt vmcnt({1-k})")
        A(f"ds_write_b128 v108, v[{8+4*k}:{11+4*k}] offset:{8192*k}")
    A("s_waitcnt lgkmcnt(0)")
    stamp(3)
    A("s_barrier")
    stamp(4)
    AX, AH, DX, DH = 40, 56, 72, 88
    for sidx in range(4):
        A(f"ds_read_b128 v[{24+4*sidx}:{27+4*sidx}], v5 offset:{K1_XT+32*sidx}")
    for sidx in range(4):
        for u in range(2):
            A(f"ds_read_b64_tr_b16 v[{AX+4*sidx+2*u}:{AX+4*sidx+2*u+1}], v6 offset:{sidx*2048+u*512}")
        for u in range(2):
            A(f"ds_read_b64_tr_b16 v[{AH+4*sidx+2*u}:{AH+4*sidx+2*u+1}], v6 offset:{8192+sidx*2048+u*512}")
    for sidx in range(4):
        A(f"s_waitcnt lgkmcnt({14-4*sidx})")
        cx = "0" if sidx == 0 else v(DX, 16)
        A(f"v_mfma_f32_32x32x16_bf16 {v(DX,16)}, {v(AX+4*sidx,4)}, {v(24+4*sidx,4)}, {cx}")
        A(f"s_waitcnt lgkmcnt({12-4*sidx})")
        ch = "0" if sidx == 0 else v(DH, 16)
        A(f"v_mfma_f32_32x32x16_bf16 {v(DH,16)}, {v(AH+4*sidx,4)}, {v(24+4*sidx,4)}, {ch}")
    A(f"s_mov_b32 s40, 0x{NEGL:x}")
    A("s_mov_b32 s41, 0x00800000")
    A("s_mov_b32 s42, 0x7fff0000")
    A("s_mov_b32 s43, 0x80000000")
    A("s_nop 7")
    A("s_nop 3")
    for i in range(16):
        A(f"v_fma_f32 v{DX+i}, s40, v{DX+i}, {KLOG}")
    for i in range(16):
        A(f"v_exp_f32 v{DX+i}, v{DX+i}")
    def comp(dst, B, lo, t1, t2):
        A(f"v_max_f32 v{t1}, abs(v{B}), s41")
        A(f"v_and_or_b32 v{t2}, v{B}, s43, v{lo}")
        A(f"v_sub_u32 v{t1}, v{t1}, v{lo}")
        A(f"v_add_u32 v{t1}, 0x8000, v{t1}")
        A(f"v_bfi_b32 v{dst}, s42, v{t1}, v{t2}")
    for grp in range(2):
        ps = [4*grp + j for j in range(4)]
        T1 = [8, 9, 10, 11]; T2 = [12, 13, 14, 15]; LO = [16, 17, 18, 19]
        for j, p in enumerate(ps):
            A(f"v_cvt_pk_bf16_f32 v{LO[j]}, v{DH+2*p}, 0")
        for j, p in enumerate(ps):
            comp(DX+2*p, DX+2*p, LO[j], T1[j], T2[j])
        for j, p in enumerate(ps):
            A(f"v_lshrrev_b32 v{LO[j]}, 16, v{DX+2*p}")
        for j, p in enumerate(ps):
            comp(DH+2*p+1, DH+2*p+1, LO[j], T1[j], T2[j])
        for j, p in enumerate(ps):
            A(f"v_lshrrev_b32 v{LO[j]}, 16, v{DH+2*p+1}")
        for j, p in enumerate(ps):
            comp(DX+2*p+1, DX+2*p+1, LO[j], T1[j], T2[j])
        for k in range(2):
            kk = 2*grp + k
            A(f"ds_write_b128 v104, v[{DX+4*kk}:{DX+4*kk+3}] offset:{16*kk}")
    A("s_waitcnt lgkmcnt(0)")
    for i in range(4):
        A(f"ds_read_b128 v[{8+4*i}:{11+4*i}], v105 offset:{8*144*i}")
    for i in range(4):
        A(f"s_waitcnt lgkmcnt({3-i})")
        A(f"buffer_store_dwordx4 v[{8+4*i}:{11+4*i}], v2, s[52:55], 0 offen offset:{2048*i if i < 2 else 2048*(i-2)}{SC}")
        if i == 1: A("v_add_u32 v2, 4096, v2")
    stamp(5)
    if DBG: A("s_waitcnt vmcnt(0)")
    stamp(6)
    rstamp(9)
    dbg_dump(10, 7, "K1_DBGG", 50 if GF else 200, 2, 2, 0)
    A("s_endpgm")
    L("K1_FRAG")
    A("s_cmp_ge_u32 s7, 8")
    A("s_cbranch_scc1 K1_END")
    A("v_and_b32 v1, 63, v0")
    A("v_lshrrev_b32 v4, 5, v1")
    A("v_and_b32 v5, 15, v1")
    A("v_lshrrev_b32 v6, 4, v1")
    A("v_lshlrev_b32 v6, 1, v6")
    A("v_lshl_add_u32 v5, v5, 3, v6")
    A("s_waitcnt lgkmcnt(0)")
    srd(36, G_, G_+1, 129*128)
    A("buffer_load_dwordx4 v[8:11], v3, s[36:39], 0 offen")
    srd(40, U_, U_+1, 8192)
    A("buffer_load_dwordx4 v[12:15], v3, s[40:43], 0 offen")
    A("s_movk_i32 s4, 0x4000")
    A("buffer_load_ushort v20, v5, s[36:39], s4 offen")
    srd(52, WS_, WS_+1, FR_SIZE, FR_OFF)
    tr_lane_addr(6, 1, 4, 7)
    A("s_lshr_b32 s4, s7, 1")
    A("s_and_b32 s5, s7, 1")
    A("s_lshl_b32 s4, s4, 13")
    A("s_lshl_b32 s5, s5, 6")
    A("s_add_u32 s4, s4, s5")
    A("v_add_u32 v6, s4, v6")
    A("v_lshlrev_b32 v2, 4, v1")
    for k in range(2):
        A(f"s_waitcnt vmcnt({2-k})")
        A(f"ds_write_b128 v3, v[{8+4*k}:{11+4*k}] offset:{8192*k}")
    A("s_waitcnt lgkmcnt(0)")
    A("s_barrier")
    A("s_cmp_eq_u32 s7, 4")
    A("s_cbranch_scc1 K1_COEF")
    A("s_cmp_gt_u32 s7, 4")
    A("s_cbranch_scc1 K1_END")
    for sidx in range(4):
        for u in range(2):
            A(f"ds_read_b64_tr_b16 v[{40+4*sidx+2*u}:{40+4*sidx+2*u+1}], v6 offset:{sidx*2048+u*512}")
    A("s_lshl_b32 s4, s7, 12")
    for sidx in range(4):
        A(f"s_waitcnt lgkmcnt({6-2*sidx})")
        A(f"buffer_store_dwordx4 v[{40+4*sidx}:{43+4*sidx}], v2, s[52:55], s4 offen offset:{1024*sidx}{SC}")
    A("s_endpgm")
    L("K1_COEF")
    A("s_waitcnt vmcnt(0)")
    A("v_lshlrev_b32 v20, 16, v20")
    A("v_and_b32 v60, 0x7fffffff, v20")
    scan64(60, "v_max_u32_dpp")
    A("s_nop 1")
    A("v_readlane_b32 s5, v60, 63")
    A("s_lshr_b32 s4, s5, 23")
    A("s_max_u32 s4, s4, 1")
    A("s_lshl_b32 s8, s4, 23")
    A("s_cmp_gt_u32 s4, 253")
    A("s_cselect_b32 s8, 0x7fc00000, s8")
    A("s_min_u32 s4, s4, 253")
    A("s_sub_u32 s4, 254, s4")
    A("s_lshl_b32 s4, s4, 23")
    A("s_or_b32 s4, s4, 0x80000000")
    A("v_mov_b32 v70, s5")
    A("v_mul_f32 v60, s4, v20")
    A("v_mul_f32 v70, s4, v70")
    A("v_mul_f32 v70, v70, v70")
    A("v_max_f32 v70, 1.0, v70")
    A("v_rcp_f32 v71, v70")
    A("v_mov_b32 v70, s8")
    for k in range(1, 8):
        A(f"v_mul_f32 v{60+k}, v{60+k-1}, v60")
    for k in range(1, 8):
        A(f"v_mul_f32 v{60+k}, 0x{f32bits(POLY[k]):x}, v{60+k}")
    for k in range(8):
        A(f"v_cvt_f16_f32 v{60+k}, v{60+k}")
    for k in range(4):
        A(f"v_pack_b32_f16 v{40+k}, v{60+2*k}, v{61+2*k}")
    A(f"s_movk_i32 s4, {FR_B}")
    A(f"buffer_store_dwordx4 v[40:43], v2, s[52:55], s4 offen{SC}")
    A("v_lshlrev_b32 v2, 3, v1")
    A(f"buffer_store_dwordx2 v[70:71], v2, s[52:55], s4 offen offset:{FR_S-FR_B}{SC}")
    L("K1_END")
    A("s_endpgm")


RS_ = 272
AGG, IA, XAL = 0, 52*RS_, 104*RS_
CNT = 156*RS_; SPN = CNT + 512; ZR = CNT + 1024
SI = CNT + 2048
CAP = 4096
PW = SI + (CAP + 256)*4
XT = PW
SLOT = PW + CAP*16 + 2560
SS = 516
SP = SLOT + 26112
K2_LDS = SP + 4096
assert PW % 16 == 0 and PW < 65536 and SLOT % 16 == 0 and K2_LDS <= 163840 and BN*SS + 8 <= 25600
DUMMY = 0x7b00

def k2():
    out.append(".globl k2_kernel")
    out.append(".p2align 8")
    out.append(".type k2_kernel,@function")
    L("k2_kernel")
    A(f"s_cmp_ge_u32 s2, {NB}")
    A("s_cbranch_scc1 K2_END")
    if int(opt("k2delay", "0")): A(f"s_sleep {int(opt('k2delay', '0'))}")
    stamp(0)
    rstamp(8)
    if DBG: A("s_mov_b32 s93, 0")
    A("s_load_dwordx16 s[16:31], s[0:1], 0")
    A("s_load_dwordx2 s[32:33], s[0:1], 72")
    A("s_and_b32 s3, s2, 7")
    A("s_lshr_b32 s2, s2, 3")
    A("s_lshl_b32 s3, s3, 5")
    A("s_or_b32 s2, s2, s3")
    S_WAVE = 7
    SRD_T, SRD_REC, SRD_A, SRD_G, SRD_X = 36, 40, 44, 48, 52
    S_W, S_OFFB, S_MODE, S_ESC = 56, 57, 58, 59
    S_M = 60
    S_NE, S_NE2 = 60, 62
    S_QR, S_DEL, S_NN, S_NST = 64, 65, 66, 67
    S_Q, S_Q1, S_RUN, S_QB, S_REM, S_END, S_BIG, S_CNODE = 74, 75, 76, 77, 78, 79, 80, 81
    S_RET = 82
    S_I, S_NODE = 84, 85
    S_THR, S_RET2 = 6, 34
    V_LANE, V_LOFF, V_PADDR, V_FOUR, V_RADDR, V_SUB3, V_CB, V_W, V_OFF = 1, 2, 3, 4, 5, 6, 7, 8, 9
    V_B = 10
    V_SC = 14
    V_END, V_BQ, V_DEL = 18, 19, 20
    V_R = 24
    V_LA = 36
    V_A = 48
    V_XD = 52
    GA, GD, V_X = 64, 80, 96
    PFL = int(flag("pf")); PFE = int(flag("pfe")); OT = int(flag("otouch"))
    NP = PFL + OT
    def prefetch():
        A("s_and_b32 s3, s2, 31")
        A("s_mul_i32 s3, s3, 391")
        A("v_lshrrev_b32 v126, 1, v0")
        A("v_add_u32 v126, s3, v126")
        A("v_cmp_gt_u32 vcc, 782, v0")
        A("v_and_b32 v127, 1, v0")
        A("v_lshlrev_b32 v127, 7, v127")
        A("v_cndmask_b32 v126, -1, v126, vcc")
        A(f"buffer_load_dword v126, v[126:127], {s4(SRD_T)}, 0 idxen offen")
    A("v_lshrrev_b32 v22, 6, v0")
    A(f"v_and_b32 v{V_LANE}, 63, v0")
    A(f"v_readfirstlane_b32 s{S_WAVE}, v22")
    A(f"v_mul_u32_u24 v{V_W}, 10923, v0")
    A(f"v_lshrrev_b32 v{V_W}, 16, v{V_W}")
    A(f"v_lshlrev_b32 v19, {OGL+2}, v{V_W}")
    A(f"v_cmp_gt_u32 vcc, {NCH}, v{V_W}")
    A(f"s_lshr_b32 s3, s2, {OGL}")
    A(f"s_lshl_b32 s3, s3, {OGL+10}")
    A(f"s_and_b32 s4, s2, {OG-1}")
    A(f"s_lshl2_add_u32 s{S_OFFB}, s4, s3")
    A(f"v_cndmask_b32 v19, 0.5, v19, vcc")
    A("v_and_b32 v22, 15, v0")
    A(f"v_lshlrev_b32 v{V_LOFF}, 4, v22")
    A(f"v_lshlrev_b32 v22, 4, v{V_LANE}")
    A(f"v_lshlrev_b32 v21, 3, v{V_LANE}")
    A(f"s_lshr_b32 s9, s{S_WAVE}, 1")
    A("s_lshl_b32 s5, s9, 12")
    A(f"s_movk_i32 s4, {FR_B}")
    A(f"s_mul_i32 s8, s2, {BN*128}")
    A(f"s_lshl_b32 s9, s{S_WAVE}, 10")
    A("s_add_u32 s8, s8, s9")
    A("s_sub_u32 s8, s8, 8192")
    A(f"v_mul_u32_u24 v{V_CB}, {SS}, v{V_LANE}")
    A(f"v_add_u32 v{V_CB}, {SLOT}, v{V_CB}")
    A("v_cmp_gt_u32 vcc, 64, v0")
    A("v_and_b32 v23, 511, v0")
    A("v_lshlrev_b32 v23, 2, v23")
    A(f"v_cndmask_b32 v48, 0, v{V_CB}, vcc")
    A("v_cmp_gt_u32 vcc, 512, v0")
    for i in range(4):
        A(f"v_mov_b32 v{56+i}, 0x{DUMMY:x}")
    A("v_lshlrev_b32 v49, 4, v0")
    A(f"v_add_u32 v49, {SLOT}, v49")
    A("s_mov_b64 exec, vcc")
    A(f"ds_write_b32 v23, v48 offset:{CNT}")
    A("s_mov_b64 exec, -1")
    A("v_cmp_gt_u32 vcc, 576, v0")
    A("ds_write_b128 v49, v[56:59]")
    A("s_mov_b64 exec, vcc")
    A("ds_write_b128 v49, v[56:59] offset:16384")
    A("s_mov_b64 exec, -1")
    A("s_waitcnt lgkmcnt(0)")
    srd(SRD_A, WS_, WS_+1, 256*1024, OFF_OFF)
    A(f"buffer_load_dword v{V_OFF}, v19, {s4(SRD_A)}, s{S_OFFB} offen")
    srd(12, WS_, WS_+1, FR_SIZE, FR_OFF)
    srd(SRD_X, X_, X_+1, N*128)
    A(f"s_cmp_ge_u32 s{S_WAVE}, 8")
    A("s_cbranch_scc1 K2_LX")
    for sidx in range(4):
        A(f"buffer_load_dwordx4 {v(GA+4*sidx,4)}, v22, s[12:15], s5 offen offset:{1024*sidx}")
    A("s_branch K2_LJ")
    L("K2_LX")
    A(f"buffer_load_dwordx4 {v(V_XD,4)}, v22, {s4(SRD_X)}, s8 offen")
    L("K2_LJ")
    A(f"buffer_load_dwordx4 {v(V_B,4)}, v22, s[12:15], s4 offen")
    A(f"buffer_load_dwordx2 {v(V_SC,2)}, v21, s[12:15], s4 offen offset:{FR_S-FR_B}")
    srd(SRD_G, G_, G_+1, 129*128)
    srd(SRD_T, WS_, WS_+1, N, T_OFF)
    A(f"s_or_b32 s{SRD_T+1}, s{SRD_T+1}, 0x1000000")
    if PFE: prefetch()
    srd(SRD_REC, WS_, WS_+1, NCH*CS, REC_OFF)
    A(f"s_mov_b32 s{S_MODE}, 0")
    A(f"v_lshrrev_b32 v{V_PADDR}, 4, v0")
    A(f"v_mul_u32_u24 v{V_PADDR}, {RS_}, v{V_PADDR}")
    A(f"v_add_u32 v{V_PADDR}, v{V_PADDR}, v{V_LOFF}")
    A(f"v_mul_u32_u24 v23, 6, v{V_W}")
    A(f"v_sub_u32 v23, v0, v23")
    A(f"v_mul_u32_u24 v{V_SUB3}, 3, v23")
    A(f"v_mul_u32_u24 v22, {CS//16}, v{V_W}")
    A(f"v_add_u32 v22, v22, v23")
    A(f"v_mov_b32 v{V_FOUR}, 4")
    A(f"v_mov_b32 v51, 0.5")
    A(f"s_cmp_ge_u32 s{S_WAVE}, 8")
    A("s_cbranch_scc1 K2_W2")
    A(f"s_waitcnt vmcnt({6+PFE})")
    A("s_branch K2_W3")
    L("K2_W2")
    A(f"s_waitcnt vmcnt({3+PFE})")
    L("K2_W3")
    stamp(1)
    A(f"v_and_b32 v23, 0xffff, v{V_OFF}")
    A(f"v_lshrrev_b32 v{V_RADDR}, 16, v{V_OFF}")
    A(f"v_sub_u32 v23, v23, v{V_SUB3} clamp")
    A(f"v_add_lshl_u32 v{V_RADDR}, v{V_RADDR}, v22, 4")
    for r in range(3):
        A(f"v_cmp_lt_u32 {s2(S_M+6*r)}, {18*r}, v23")
    for r in range(3):
        A(f"v_cndmask_b32 v{V_A+r}, v51, v{V_RADDR}, {s2(S_M+6*r)}")
        A(f"buffer_load_dwordx4 {v(V_R+4*r,4)}, v{V_A+r}, {s4(SRD_REC)}, 0 offen offset:{96*r}")
    if PFL: prefetch()
    if OT:
        srd(12, OUT_, OUT_+1, N*128)
        A(f"s_mul_i32 s5, s2, {BN*128}")
        A("buffer_load_dword v127, off, s[12:15], s5")
    for r in range(3):
        for j in (1, 2):
            A(f"v_cmp_lt_u32 {s2(S_M+6*r+2*j)}, {18*r+j}, v23")
    A(f"s_cmp_lt_u32 s{S_WAVE}, 8")
    A("s_cbranch_scc1 K2_GEMM")
    A(f"v_lshrrev_b32 v56, 3, v0")
    A(f"v_mul_u32_u24 v56, 144, v56")
    A(f"v_and_b32 v57, 7, v0")
    A(f"v_lshl_add_u32 v56, v57, 4, v56")
    A(f"s_waitcnt vmcnt({5+NP+PFE})")
    A(f"ds_write_b128 v56, {v(V_XD,4)} offset:{XT-64*144}")
    A("s_waitcnt lgkmcnt(0)")
    A("s_barrier")
    A("s_branch K2_RANK")
    L("K2_GEMM")
    A(f"s_and_b32 s8, s{S_WAVE}, 1")
    A("s_lshl_b32 s8, s8, 5")
    A(f"v_and_b32 v56, 31, v{V_LANE}")
    A(f"v_lshrrev_b32 v57, 5, v{V_LANE}")
    A(f"v_add_u32 v56, s8, v56")
    A(f"v_mul_u32_u24 v58, 144, v56")
    A(f"v_lshl_add_u32 v58, v57, 4, v58")
    A(f"s_lshr_b32 s4, s{S_WAVE}, 2")
    A(f"s_bfe_u32 s5, s{S_WAVE}, 0x10001")
    A(f"v_mul_u32_u24 v59, {RS_}, v56")
    A("v_lshl_add_u32 v59, v57, 6, v59")
    A("s_lshl_b32 s9, s5, 7")
    A("v_add_u32 v59, s9, v59")
    A(f"v_cmp_gt_u32 s[10:11], {BN}, v56")
    A("s_barrier")
    for sidx in range(4):
        A(f"ds_read_b128 {v(V_X+4*sidx,4)}, v58 offset:{XT+32*sidx}")
    A(f"s_waitcnt vmcnt({5+NP+PFE})")
    for sidx in range(4):
        A(f"s_waitcnt lgkmcnt({3-sidx})")
        c = "0" if sidx == 0 else v(GD, 16)
        A(f"v_mfma_f32_32x32x16_bf16 {v(GD,16)}, {v(GA+4*sidx,4)}, {v(V_X+4*sidx,4)}, {c}")
    A(f"s_mov_b32 s8, 0x{NEGL:x}")
    A(f"s_mov_b32 s9, 0x{f32bits(3.3):x}")
    A("s_nop 7")
    A("s_nop 3")
    A("s_cmp_lg_u32 s4, 0")
    A("s_mov_b64 exec, s[10:11]")
    A("s_cbranch_scc1 K2_GU")
    for i in range(16):
        A(f"v_mul_f32 v{GD+i}, s8, v{GD+i}")
    for kk in range(4):
        A(f"ds_write_b128 v59, {v(GD+4*kk,4)} offset:{XAL+16*kk}")
    for i in range(16):
        A(f"v_sub_f32 v{GA+i}, {KLOG}, v{GD+i}")
    A(f"v_max_f32 v60, v{GD}, v{GD+1}")
    for i in range(7):
        A(f"v_max3_f32 v60, v60, v{GD+2+2*i}, v{GD+3+2*i}")
    A("v_cmp_ge_f32 vcc, s9, v60")
    for i in range(16):
        A(f"v_exp_f32 v{GA+i}, v{GA+i}")
    A(f"v_cndmask_b32 v{GA}, -1, v{GA}, vcc")
    for kk in range(4):
        A(f"ds_write_b128 v59, {v(GA+4*kk,4)} offset:{IA+16*kk}")
    A("s_branch K2_GJ")
    L("K2_GU")
    for kk in range(4):
        A(f"ds_write_b128 v59, {v(GD+4*kk,4)} offset:{AGG+16*kk}")
    L("K2_GJ")
    A("s_mov_b64 exec, -1")
    L("K2_RANK")
    def nodebyte(dst, src, j):
        if j == 0: A(f"v_and_b32 v{dst}, 0xff, v{src}")
        else: A(f"v_bfe_u32 v{dst}, v{src}, {8*j}, 8")
    A(f"s_mov_b32 s8, {SLOT+25592}")
    for r in range(2):
        A(f"s_waitcnt vmcnt({2-r+NP})")
        for j in range(3):
            nodebyte(V_LA+3*r+j, V_R+4*r+3, j)
        for j in range(3):
            A(f"s_mov_b64 exec, {s2(S_M+6*r+2*j)}")
            A(f"ds_add_rtn_u32 v{V_LA+3*r+j}, v{V_LA+3*r+j}, v{V_FOUR} offset:{CNT}")
        A("s_mov_b64 exec, -1")
    for k in range(6):
        r, j = divmod(k, 3)
        A("s_waitcnt lgkmcnt(5)")
        A(f"s_mov_b64 exec, {s2(S_M+6*r+2*j)}")
        A(f"v_min_u32 v{V_LA+k}, s8, v{V_LA+k}")
        A(f"ds_write_b32 v{V_LA+k}, v{V_R+4*r+j}")
    A("s_mov_b64 exec, -1")
    A(f"s_waitcnt vmcnt({NP})")
    A(f"v_readfirstlane_b32 s{S_ESC}, v{V_SC}")
    A(f"v_readfirstlane_b32 s{S_THR}, v{V_SC+1}")
    A(f"s_cmp_eq_u64 {s2(S_M+12)}, 0")
    A("s_cbranch_scc1 K2_NOR3")
    for j in range(3):
        nodebyte(V_LA+6+j, V_R+11, j)
    for j in range(3):
        A(f"s_mov_b64 exec, {s2(S_M+12+2*j)}")
        A(f"ds_add_rtn_u32 v{V_LA+6+j}, v{V_LA+6+j}, v{V_FOUR} offset:{CNT}")
    A("s_waitcnt lgkmcnt(0)")
    for j in range(3):
        A(f"s_mov_b64 exec, {s2(S_M+12+2*j)}")
        A(f"v_min_u32 v{V_LA+6+j}, s8, v{V_LA+6+j}")
        A(f"ds_write_b32 v{V_LA+6+j}, v{V_R+8+j}")
    A("s_mov_b64 exec, -1")
    A("v_cmpx_lt_u32 vcc, 54, v23")
    A("v_mov_b32 v56, 0")
    A("v_mov_b32 v57, 0x100000")
    A(f"ds_write_b32 v56, v57 offset:{CNT+252}")
    A("s_mov_b64 exec, -1")
    L("K2_NOR3")
    A(f"v_lshlrev_b32 v52, 2, v{V_LANE}")
    A("s_waitcnt lgkmcnt(0)")
    stamp(2)
    A("s_barrier")
    stamp(3)
    A(f"ds_read_b32 v53, v52 offset:{CNT}")
    A("s_waitcnt lgkmcnt(0)")
    A(f"v_sub_u32 v53, v53, v{V_CB}")
    A("v_add_u32 v56, 12, v53")
    A("v_lshrrev_b32 v56, 4, v56")
    A(f"v_mov_b32 v{V_END}, v56")
    scan64(V_END)
    A("v_cmp_lt_u32 vcc, 32, v56")
    A(f"v_cmp_ne_u32 {s2(S_NE)}, 0, v56")
    A(f"v_readlane_b32 s12, v{V_END}, 63")
    A(f"v_sub_u32 v{V_BQ}, v{V_END}, v56")
    A(f"v_lshlrev_b32 v57, 4, v{V_BQ}")
    A(f"v_sub_u32 v{V_DEL}, v{V_CB}, v57")
    A("s_cbranch_vccnz K2_GENERAL")
    A(f"s_cmp_gt_u32 s12, {CAP//4}")
    A("s_cbranch_scc1 K2_GENERAL")
    L("K2_SETUP")
    IX = 24
    AR = 32
    PR = 48
    DS = 56
    VIA, VIAN, VN, VD, VACC, VS, VH, VU, VT = 72, 76, 80, 84, 88, 92, 96, 100, 104
    VRA, VRI, VINC, VDST, VG4, VNX, VREC, VP4, VLQ, VDL = 108, 109, 110, 111, 112, 113, 114, 115, 116, 117
    SL = 118
    VPREV, VPN = 124, 125
    S_PAR = 9
    A(f"s_mul_i32 s13, s12, s{S_WAVE}")
    A(f"s_add_u32 s14, s13, s12")
    A(f"s_lshr_b32 s{S_Q}, s13, 4")
    A(f"s_lshr_b32 s{S_Q1}, s14, 4")
    A(f"v_cmp_lt_u32 vcc, s{S_Q}, v{V_END}")
    A(f"s_mov_b32 s4, 0x7fffffff")
    A(f"v_writelane_b32 v{V_BQ}, s4, 63")
    A(f"s_lshl_b32 s15, s{S_WAVE}, 2")
    A(f"v_mov_b32 v{VU}, s15")
    A(f"v_mov_b32 v{VU+1}, 0xffff")
    A(f"ds_write_b32 v{VU}, v{VU+1} offset:{SPN}")
    A(f"s_cmp_eq_u32 s{S_Q}, s{S_Q1}")
    if flag("xnomain"): A(f"s_cmp_eq_u32 s{S_Q}, s{S_Q}")
    A("s_cbranch_scc1 K2_MAINDONE")
    A(f"s_and_b64 {s2(S_NE)}, {s2(S_NE)}, vcc")
    A(f"s_ff1_i32_b64 s{S_CNODE}, {s2(S_NE)}")
    A(f"s_bitset0_b64 {s2(S_NE)}, s{S_CNODE}")
    A(f"s_mov_b64 {s2(S_NE2)}, {s2(S_NE)}")
    A(f"s_bitset1_b64 {s2(S_NE2)}, 63")
    A(f"s_ff1_i32_b64 s{S_NN}, {s2(S_NE2)}")
    A(f"v_readlane_b32 s{S_DEL}, v{V_DEL}, s{S_CNODE}")
    A(f"v_readlane_b32 s{S_NST}, v{V_BQ}, s{S_NN}")
    A(f"v_lshrrev_b32 v{VLQ}, 2, v{V_LANE}")
    A(f"s_lshl_b32 s4, s{S_Q}, 4")
    A(f"v_lshl_add_u32 v{VP4}, v{V_LANE}, 2, s4")
    A(f"s_mov_b32 s{S_QR}, s{S_Q}")
    mapn = [0]
    def mapread():
        t = mapn[0]; mapn[0] += 1
        A(f"v_add_u32 v{VDL}, s{S_DEL}, v{VP4}")
        A(f"s_sub_u32 s4, s{S_NST}, s{S_QR}")
        A("s_cmp_ge_u32 s4, 16")
        A(f"s_cbranch_scc1 K2_MD{t}")
        L(f"K2_ML{t}")
        A(f"v_readlane_b32 s{S_DEL}, v{V_DEL}, s{S_NN}")
        A(f"s_bitset0_b64 {s2(S_NE2)}, s{S_NN}")
        A(f"s_ff1_i32_b64 s{S_NN}, {s2(S_NE2)}")
        A(f"v_readlane_b32 s{S_NST}, v{V_BQ}, s{S_NN}")
        A(f"v_cmpx_le_u32 vcc, s4, v{VLQ}")
        A(f"v_add_u32 v{VDL}, s{S_DEL}, v{VP4}")
        A("s_mov_b64 exec, -1")
        A(f"s_sub_u32 s4, s{S_NST}, s{S_QR}")
        A("s_cmp_lt_u32 s4, 16")
        A(f"s_cbranch_scc1 K2_ML{t}")
        L(f"K2_MD{t}")
        A(f"ds_read_b32 v{VREC}, v{VDL}")
        A(f"s_add_u32 s{S_QR}, s{S_QR}, 16")
    def powers():
        A(f"ds_write_b32 v{VP4}, v{VREC} offset:{SI}")
        A(f"v_and_b32 v{VT+1}, 0xffff0000, v{VREC}")
        A(f"v_mul_f32 v{VT+1}, s{S_ESC}, v{VT+1}")
        A(f"v_mul_f32 v{VT+2}, v{VT+1}, v{VT+1}")
        A(f"v_cmp_ge_f32 vcc, s{S_THR}, v{VT+2}")
        A(f"v_cvt_pkrtz_f16_f32 v{VT}, v{VT+1}, v{VT+2}")
        A(f"v_lshlrev_b32 v{VDL}, 2, v{VP4}")
        A(f"v_add_u32 v{VP4}, 0x100, v{VP4}")
        A(f"v_cndmask_b32 v{VT}, -1, v{VT}, vcc")
        for j in range(3):
            A(f"v_pk_mul_f16 v{VT+j+1}, v{VT+j}, v{VT} op_sel:[0,1] op_sel_hi:[1,1]")
        A(f"ds_write_b128 v{VDL}, {v(VT,4)} offset:{PW}")
    mapread()
    A(f"v_lshrrev_b32 v{VG4}, 4, v{V_LANE}")
    A(f"v_and_b32 v{VT}, 3, v{V_LANE}")
    A(f"v_cmp_eq_u32 vcc, v{VT}, v{VG4}")
    A(f"v_mov_b32 v{VT+1}, 512")
    A(f"v_bfe_u32 v{VT}, v{V_LANE}, 2, 2")
    A(f"v_cndmask_b32 v{VINC}, 0, v{VT+1}, vcc")
    A(f"s_lshl_b32 s4, s{S_Q}, 6")
    A(f"s_add_u32 s4, s4, {PW}")
    A(f"v_lshl_add_u32 v{VT}, v{VT}, 4, s4")
    A(f"v_mov_b32 v{VT+1}, {ZR}")
    A(f"v_cndmask_b32 v{VRA}, v{VT+1}, v{VT}, vcc")
    A(f"v_lshlrev_b32 v{VG4}, 2, v{VG4}")
    A(f"s_lshl_b32 s4, s{S_Q}, 4")
    A(f"s_add_u32 s4, s4, {SI}")
    A(f"v_add_u32 v{VRI}, s4, v{VG4}")
    for k in range(4):
        A(f"v_mov_b32 v{IX+2*k+1}, v{V_LOFF}")
    A(f"s_mov_b32 s{S_PAR}, 0")
    A(f"v_readlane_b32 s{S_END}, v{V_END}, s{S_CNODE}")
    A(f"v_readlane_b32 s5, v{V_BQ}, s{S_CNODE}")
    A(f"s_mul_i32 s4, s{S_CNODE}, {RS_}")
    A(f"v_add_u32 v{VNX}, s4, v{V_LOFF}")
    A(f"v_add_u32 v{VDST}, v{VNX}, v{VG4}")
    A(f"v_mov_b32 v{VPN}, v{VDST}")
    A(f"s_cmp_lt_u32 s5, s{S_Q}")
    A("s_cbranch_scc0 K2_NOSHARE")
    A(f"s_lshl_b32 s4, s{S_WAVE}, 8")
    A(f"s_add_u32 s4, s4, {SP}")
    A(f"v_add3_u32 v{VDST}, v{V_LOFF}, v{VG4}, s4")
    A(f"v_mov_b32 v{VU+1}, s{S_CNODE}")
    A(f"v_mov_b32 v{VPN}, {ZR}")
    A(f"ds_write_b32 v{VU}, v{VU+1} offset:{SPN}")
    L("K2_NOSHARE")
    A(f"ds_read_b32 v{VPREV}, v{VPN}")
    A(f"ds_read_b128 {v(VIA,4)}, v{VNX} offset:{IA}")
    A(f"s_min_u32 s{S_REM}, s{S_END}, s{S_Q1}")
    A(f"s_sub_u32 s{S_REM}, s{S_REM}, s{S_Q}")
    A(f"s_mov_b32 s{S_RUN}, s{S_Q}")
    A(f"s_mov_b32 s{S_BIG}, 0x{f32bits(2.0**118):x}")
    A("s_waitcnt lgkmcnt(2)")
    A(f"ds_write_b32 v{VP4}, v{VREC} offset:{SI}")
    for k in range(4):
        A(f"ds_read_u16 v{IX+2*k}, v{VRI} offset:{16*k}")
    n0 = len(out)
    powers()
    del out[n0]
    tail = out[n0:]; del out[n0:]
    out.extend(tail[:5])
    for k in range(3):
        A(f"s_waitcnt lgkmcnt({3-k})")
        A(f"buffer_load_dwordx4 {v(DS+4*k,4)}, {v(IX+2*k,2)}, {s4(SRD_T)}, 0 idxen offen")
    out.extend(tail[5:])
    for k in range(3):
        A(f"ds_read_b128 {v(AR+4*k,4)}, v{VRA} offset:{64*k}")
    for k in range(4, 6):
        A(f"ds_read_u16 v{IX+2*(k%4)}, v{VRI} offset:{16*k}")
    mapread()
    for i in range(4):
        A(f"v_mov_b32 v{VN+i}, 0")
        A(f"v_mov_b32 v{VD+i}, 1.0")
        A(f"v_mov_b32 v{VACC+i}, 0")
    A("s_waitcnt lgkmcnt(5)")
    A(f"v_mfma_f32_16x16x32_f16 {v(PR,4)}, {v(AR,4)}, {v(V_B,4)}, 1.0")
    A("s_waitcnt lgkmcnt(0)")
    stamp(4)
    PRIO = not flag("noprio")
    if PRIO: A("s_setprio 3")
    L("K2_LOOP")
    for k in range(8):
        d3 = DS + 4*((k+3) % 4); d0 = DS + 4*(k % 4)
        pc = PR + 4*(k % 2); pn = PR + 4*((k+1) % 2)
        A(f"ds_read_u16 v{IX+2*((k+2)%4)}, v{VRI} offset:{16*(k+6)}")
        A(f"ds_read_b128 {v(AR+4*((k+3)%4),4)}, v{VRA} offset:{64*(k+3)}")
        A("s_waitcnt lgkmcnt(4)")
        A(f"buffer_load_dwordx4 {v(d3,4)}, {v(IX+2*((k+3)%4),2)}, {s4(SRD_T)}, 0 idxen offen")
        A(f"v_mfma_f32_16x16x32_f16 {v(pn,4)}, {v(AR+4*((k+1)%4),4)}, {v(V_B,4)}, 1.0")
        A("s_waitcnt vmcnt(3)")
        A(f"v_lshlrev_b64 {v(VH,2)}, 16, {v(d0,2)}")
        A(f"v_lshlrev_b64 {v(VH+2,2)}, 16, {v(d0+2,2)}")
        for j in (0, 2):
            A(f"v_pk_fma_f32 {v(VS+j,2)}, {v(d0+j,2)}, {v(pc+j,2)}, {v(VIA+j,2)}")
        for j in (0, 2):
            A(f"v_pk_mul_f32 {v(VU+j,2)}, {v(VH+j,2)}, {v(VD+j,2)}")
        for j in (0, 2):
            A(f"v_pk_fma_f32 {v(VN+j,2)}, {v(VN+j,2)}, {v(VS+j,2)}, {v(VU+j,2)}")
            A(f"v_pk_mul_f32 {v(VD+j,2)}, {v(VD+j,2)}, {v(VS+j,2)}")
        A(f"s_cmp_eq_u32 s{S_REM}, {k+1}")
        A(f"s_cbranch_scc1 K2_FL{k}")
        L(f"K2_BK{k}")
    A(f"v_add_u32 v{VRI}, 128, v{VRI}")
    A(f"v_add_u32 v{VRA}, v{VINC}, v{VRA}")
    A(f"s_add_u32 s{S_Q}, s{S_Q}, 8")
    A(f"s_sub_u32 s{S_REM}, s{S_REM}, 8")
    A(f"s_xor_b32 s{S_PAR}, s{S_PAR}, 1")
    A("s_cbranch_scc0 K2_NOPW")
    powers()
    mapread()
    L("K2_NOPW")
    if PRIO:
        TH = [int(x) for x in opt("prth", "24,16,8").split(",")]
        A(f"s_sub_u32 s3, s{S_Q1}, s{S_Q}")
        A(f"s_cmp_gt_i32 s3, {TH[0]}")
        A("s_cbranch_scc1 K2_PRX")
        A("s_setprio 2")
        A(f"s_cmp_gt_i32 s3, {TH[1]}")
        A("s_cbranch_scc1 K2_PRX")
        A("s_setprio 1")
        A(f"s_cmp_gt_i32 s3, {TH[2]}")
        A("s_cbranch_scc1 K2_PRX")
        A("s_setprio 0")
        L("K2_PRX")
    A(f"s_sub_u32 s3, s{S_Q}, s{S_RUN}")
    A("s_cmp_lt_u32 s3, 16")
    A("s_cbranch_scc1 K2_LOOP")
    def resolve(tag):
        for j in (0, 2):
            A(f"v_pk_mul_f32 {v(VN+j,2)}, {v(VN+j,2)}, {v(VIA+j,2)}")
        A(f"v_pk_add_f32 {v(VH,2)}, {v(VD,2)}, {v(VD+2,2)}")
        for j in (0, 2):
            A(f"v_pk_mul_f32 {v(VU+j,2)}, {v(VN+j,2)}, {v(VT+j,2)}")
        A(f"v_pk_fma_f32 {v(VH,2)}, {v(VU,2)}, 0, {v(VH,2)} op_sel_hi:[1,0,1]")
        A(f"v_pk_fma_f32 {v(VH,2)}, {v(VU+2,2)}, 0, {v(VH,2)} op_sel_hi:[1,0,1]")
        A(f"v_add_f32 v{VH}, v{VH}, v{VH+1}")
        A(f"v_cmp_ngt_f32 vcc, s{S_BIG}, v{VH}")
        A(f"s_cbranch_vccz K2_FOK{tag}")
        A(f"s_call_b64 {s2(S_RET2)}, K2_SLOW")
        L(f"K2_FOK{tag}")
        for j in (0, 2):
            A(f"v_pk_add_f32 {v(VACC+j,2)}, {v(VACC+j,2)}, {v(VU+j,2)}")
    for i in range(4):
        A(f"v_rcp_f32 v{VT+i}, v{VD+i}")
    A(f"s_sub_u32 s{S_QB}, s{S_Q}, 1")
    resolve("R")
    for i in range(4):
        A(f"v_mov_b32 v{VN+i}, 0")
        A(f"v_mov_b32 v{VD+i}, 1.0")
    A(f"s_mov_b32 s{S_RUN}, s{S_Q}")
    A("s_branch K2_LOOP")
    for k in range(8):
        L(f"K2_FL{k}")
        A(f"s_call_b64 {s2(S_RET)}, K2_FLUSH")
        A(f"s_cbranch_scc0 K2_BK{k}")
        A(f"s_branch K2_MAINDONE")
    L("K2_FLUSH")
    for i in range(4):
        A(f"v_rcp_f32 v{VT+i}, v{VD+i}")
    A(f"s_ff1_i32_b64 s{S_NODE}, {s2(S_NE)}")
    A(f"s_max_i32 s{S_NODE}, s{S_NODE}, 0")
    A(f"s_bitset0_b64 {s2(S_NE)}, s{S_NODE}")
    A(f"s_mul_i32 s8, s{S_NODE}, {RS_}")
    A(f"v_add_u32 v{VNX}, s8, v{V_LOFF}")
    A(f"ds_read_b128 {v(VIAN,4)}, v{VNX} offset:{IA}")
    A(f"v_add_u32 v{VNX}, v{VNX}, v{VG4}")
    A(f"ds_read_b32 v{VPN}, v{VNX}")
    A(f"v_readlane_b32 s{S_END}, v{V_END}, s{S_NODE}")
    A(f"s_add_u32 s{S_QB}, s{S_Q}, s{S_REM}")
    A(f"s_sub_u32 s{S_QB}, s{S_QB}, 1")
    resolve("F")
    A(f"v_mov_b32 v{VN}, 0")
    A(f"v_mov_b32 v{VN+1}, 0")
    A(f"v_permlane32_swap_b32 v{VACC}, v{VACC+2}")
    A(f"v_permlane32_swap_b32 v{VACC+1}, v{VACC+3}")
    A(f"v_mov_b32 v{VN+2}, 0")
    A(f"v_pk_add_f32 {v(VU,2)}, {v(VACC,2)}, {v(VACC+2,2)}")
    A(f"v_mov_b32 v{VN+3}, 0")
    A(f"v_mov_b32 v{VD}, 1.0")
    A(f"v_permlane16_swap_b32 v{VU}, v{VU+1}")
    A(f"v_mov_b32 v{VD+1}, 1.0")
    A(f"v_add_f32 v{VU}, v{VU}, v{VU+1}")
    A(f"v_add_f32 v{VU}, v{VU}, v{VPREV}")
    A(f"ds_write_b32 v{VDST}, v{VU}")
    A(f"s_add_u32 s{S_RUN}, s{S_QB}, 1")
    A(f"s_min_u32 s{S_REM}, s{S_END}, s{S_Q1}")
    A(f"s_sub_u32 s{S_REM}, s{S_REM}, s{S_Q}")
    A(f"s_mov_b32 s{S_CNODE}, s{S_NODE}")
    A(f"v_mov_b32 v{VDST}, v{VNX}")
    A(f"v_mov_b32 v{VD+2}, 1.0")
    A(f"v_mov_b32 v{VD+3}, 1.0")
    for i in range(4):
        A(f"v_mov_b32 v{VACC+i}, 0")
    A("s_waitcnt lgkmcnt(1)")
    for i in range(4):
        A(f"v_mov_b32 v{VIA+i}, v{VIAN+i}")
    A(f"v_mov_b32 v{VPREV}, v{VPN}")
    A(f"s_cmp_eq_u32 s{S_RUN}, s{S_Q1}")
    A(f"s_setpc_b64 {s2(S_RET)}")
    L("K2_SLOW")
    if DBG: A("s_add_u32 s93, s93, 1")
    for i in range(4):
        A(f"v_mov_b32 v{VU+i}, 0")
    A(f"s_mov_b32 s{S_I}, s{S_RUN}")
    A(f"s_mov_b32 s15, 0x{NEGL:x}")
    A(f"v_lshrrev_b32 v{SL+4}, 1, v{V_LOFF}")
    L("K2_SLOWL")
    A(f"s_lshl_b32 s12, s{S_I}, 4")
    A(f"s_add_u32 s12, s12, {SI}")
    A(f"v_add_u32 v{SL}, s12, v{VG4}")
    A(f"ds_read_b32 v{SL+2}, v{SL}")
    A("s_movk_i32 s12, 0x4000")
    A(f"buffer_load_dwordx2 {v(VN,2)}, v{SL+4}, {s4(SRD_G)}, s12 offen")
    A(f"v_mov_b32 v{SL+1}, v{V_LOFF}")
    A("s_waitcnt lgkmcnt(0)")
    A(f"v_and_b32 v{SL}, 0xffff, v{SL+2}")
    A(f"buffer_load_dwordx4 {v(VT,4)}, {v(SL,2)}, {s4(SRD_T)}, 0 idxen offen")
    A(f"v_and_b32 v{SL+3}, 0xffff0000, v{SL+2}")
    A(f"v_lshlrev_b32 v{SL+5}, 7, v{SL}")
    A("s_waitcnt vmcnt(0)")
    A(f"v_lshlrev_b32 v{VS}, 16, v{VN}")
    A(f"v_and_b32 v{VS+1}, 0xffff0000, v{VN}")
    A(f"v_lshlrev_b32 v{VS+2}, 16, v{VN+1}")
    A(f"v_and_b32 v{VS+3}, 0xffff0000, v{VN+1}")
    for i in range(4):
        A(f"v_mul_f32 v{VS+i}, v{VS+i}, v{SL+3}")
    A(f"v_lshlrev_b64 {v(VH,2)}, 16, {v(VT,2)}")
    A(f"v_lshlrev_b64 {v(VH+2,2)}, 16, {v(VT+2,2)}")
    A("s_mov_b32 s13, 0")
    L("K2_SLOWK")
    A(f"buffer_load_dwordx2 {v(SL+2,2)}, v{SL+5}, {s4(SRD_X)}, s13 offen")
    A("s_lshl_b32 s14, s13, 6")
    A("s_add_u32 s14, s14, 0x2000")
    for j in range(4):
        A(f"buffer_load_dwordx2 {v(VN+2*j,2)}, v{SL+4}, {s4(SRD_G)}, s14 offen offset:{128*j}")
    A("s_waitcnt vmcnt(0)")
    for j in range(4):
        src = SL + 2 + (j >> 1)
        if j & 1: A(f"v_and_b32 v{VT}, 0xffff0000, v{src}")
        else: A(f"v_lshlrev_b32 v{VT}, 16, v{src}")
        for i in range(4):
            w = VN + 2*j + (i >> 1)
            if i & 1: A(f"v_and_b32 v{VT+1}, 0xffff0000, v{w}")
            else: A(f"v_lshlrev_b32 v{VT+1}, 16, v{w}")
            A(f"v_fma_f32 v{VS+i}, v{VT}, v{VT+1}, v{VS+i}")
    A("s_add_u32 s13, s13, 8")
    A("s_cmp_lt_u32 s13, 128")
    A("s_cbranch_scc1 K2_SLOWK")
    A(f"s_mul_i32 s12, s{S_CNODE}, {RS_}")
    A(f"v_add_u32 v{SL+2}, s12, v{V_LOFF}")
    A(f"ds_read_b128 {v(VT,4)}, v{SL+2} offset:{XAL}")
    A("s_waitcnt lgkmcnt(0)")
    for i in range(4):
        A(f"v_fma_f32 v{VS+i}, v{VS+i}, s15, v{VT+i}")
    for i in range(4):
        A(f"v_exp_f32 v{VS+i}, v{VS+i}")
    A("s_nop 0")
    for i in range(4):
        A(f"v_add_f32 v{VS+i}, 1.0, v{VS+i}")
    for i in range(4):
        A(f"v_rcp_f32 v{VS+i}, v{VS+i}")
    A("s_nop 0")
    for i in range(4):
        A(f"v_fma_f32 v{VU+i}, v{VH+i}, v{VS+i}, v{VU+i}")
    A(f"s_add_u32 s{S_I}, s{S_I}, 1")
    A(f"s_cmp_le_u32 s{S_I}, s{S_QB}")
    A("s_cbranch_scc1 K2_SLOWL")
    A(f"s_setpc_b64 {s2(S_RET2)}")
    L("K2_GENERAL")
    A(f"s_mov_b32 s{S_MODE}, 1")
    A(f"s_mov_b32 s{S_W}, -1")
    A("s_branch K2_NEXTWIN")
    L("K2_MAINDONE")
    if PRIO: A("s_setprio 0")
    A("s_waitcnt lgkmcnt(0)")
    stamp(5)
    A("s_barrier")
    stamp(6)
    A(f"s_cmp_gt_u32 s{S_WAVE}, 12")
    A("s_cbranch_scc1 K2_NOACC")
    A(f"ds_read_b128 v[24:27], v{V_PADDR} offset:{AGG}")
    A(f"v_lshrrev_b32 v28, 2, v{V_LOFF}")
    A(f"ds_read_b32 v29, v28 offset:{SPN}")
    A(f"v_lshrrev_b32 v31, 4, v0")
    A("s_waitcnt lgkmcnt(0)")
    A("v_lshrrev_b32 v30, 2, v29")
    A(f"v_cmp_eq_u32 vcc, s{S_WAVE}, v30")
    A("s_and_b32 s8, vcc_lo, 0xffff")
    A("s_cbranch_scc0 K2_NOSP")
    L("K2_SPL")
    A("s_ff1_i32_b32 s9, s8")
    A("s_bitset0_b32 s8, s9")
    A("v_readlane_b32 s10, v29, s9")
    A("s_lshl_b32 s9, s9, 8")
    A(f"s_add_u32 s9, s9, {SP}")
    A(f"v_add_u32 v30, s9, v{V_LOFF}")
    A(f"ds_read_b128 v[32:35], v30")
    A("v_cmp_eq_u32 vcc, s10, v31")
    A("s_waitcnt lgkmcnt(0)")
    A("s_mov_b64 exec, vcc")
    A(f"v_pk_add_f32 v[24:25], v[24:25], v[32:33]")
    A(f"v_pk_add_f32 v[26:27], v[26:27], v[34:35]")
    A("s_mov_b64 exec, -1")
    A("s_cmp_lg_u32 s8, 0")
    A("s_cbranch_scc1 K2_SPL")
    L("K2_NOSP")
    A(f"s_cmp_eq_u32 s{S_MODE}, 0")
    A("s_cbranch_scc1 K2_EPI")
    A(f"ds_write_b128 v{V_PADDR}, v[24:27] offset:{AGG}")
    A("s_waitcnt lgkmcnt(0)")
    L("K2_NOACC")
    A(f"s_cmp_eq_u32 s{S_MODE}, 0")
    A("s_cbranch_scc1 K2_END")
    L("K2_NEXTWIN")
    A(f"s_add_u32 s{S_W}, s{S_W}, 1")
    A(f"s_cmp_ge_u32 s{S_W}, {2*NCH}")
    A("s_cbranch_scc1 K2_LASTWIN")
    A(f"s_lshr_b32 s9, s{S_W}, 1")
    A(f"s_and_b32 s10, s{S_W}, 1")
    A(f"s_lshl_b32 s4, s9, {OGL+2}")
    A("v_mov_b32 v22, s4")
    A(f"buffer_load_dword v{V_OFF}, v22, {s4(SRD_A)}, s{S_OFFB} offen")
    A("s_mul_i32 s11, s10, 3072")
    A("s_lshl_b32 s10, s10, 10")
    A("s_waitcnt vmcnt(0)")
    A(f"v_readfirstlane_b32 s4, v{V_OFF}")
    A("s_and_b32 s5, s4, 0xffff")
    A("s_cmp_le_u32 s5, s11")
    A("s_cbranch_scc1 K2_NEXTWIN")
    A("s_sub_u32 s5, s5, s11")
    A("s_lshr_b32 s4, s4, 16")
    A(f"s_mul_i32 s8, s9, {CS//16}")
    A("s_add_u32 s4, s4, s8")
    A("s_add_u32 s4, s4, s10")
    A(f"v_add_lshl_u32 v{V_RADDR}, s4, v0, 4")
    A("v_mul_u32_u24 v22, 3, v0")
    A("v_sub_u32 v23, s5, v22 clamp")
    A("v_mov_b32 v51, 0.5")
    for j in range(3):
        A(f"v_cmp_lt_u32 {s2(S_M+2*j)}, {j}, v23")
    A(f"v_cndmask_b32 v{V_A}, v51, v{V_RADDR}, {s2(S_M)}")
    A(f"buffer_load_dwordx4 {v(V_R,4)}, v{V_A}, {s4(SRD_REC)}, 0 offen")
    A("s_barrier")
    A(f"v_lshlrev_b32 v52, 2, v{V_LANE}")
    A("v_mov_b32 v53, 0")
    A(f"ds_write_b32 v52, v53 offset:{CNT}")
    A("s_waitcnt vmcnt(0) lgkmcnt(0)")
    A("s_barrier")
    for k in range(3):
        r, j = divmod(k, 3)
        nodebyte(V_LA+k, V_R+4*r+3, j)
    for k in range(3):
        A(f"s_mov_b64 exec, {s2(S_M+2*k)}")
        A(f"ds_add_rtn_u32 v{56+k}, v{V_LA+k}, v{V_FOUR} offset:{CNT}")
    A("s_mov_b64 exec, -1")
    A("s_waitcnt lgkmcnt(0)")
    A("s_barrier")
    A(f"ds_read_b32 v53, v52 offset:{CNT}")
    A("s_waitcnt lgkmcnt(0)")
    A("v_add_u32 v54, 12, v53")
    A("v_lshrrev_b32 v54, 4, v54")
    A(f"v_mov_b32 v{V_END}, v54")
    scan64(V_END)
    A(f"v_cmp_ne_u32 s[10:11], 0, v54")
    A(f"v_mov_b32 v{V_DEL}, {SLOT}")
    A(f"v_readlane_b32 s12, v{V_END}, 63")
    A(f"v_sub_u32 v{V_BQ}, v{V_END}, v54")
    A(f"v_lshl_add_u32 v55, v{V_BQ}, 4, v{V_DEL}")
    for k in range(3):
        A(f"ds_bpermute_b32 v{64+k}, v{V_LA+k}, v55")
    A(f"v_mov_b32 v62, 0x{DUMMY:x}")
    A("v_add_u32 v63, v55, v53")
    A("v_lshlrev_b32 v54, 4, v54")
    A("v_sub_u32 v54, v54, v53")
    A("s_waitcnt lgkmcnt(0)")
    for k in range(3):
        r, j = divmod(k, 3)
        A(f"s_mov_b64 exec, {s2(S_M+2*k)}")
        A(f"v_add_u32 v{64+k}, v{64+k}, v{56+k}")
        A(f"ds_write_b32 v{64+k}, v{V_R+4*r+j}")
    A("s_mov_b64 exec, -1")
    for j in range(3):
        A(f"v_cmpx_lt_u32 vcc, {4*j}, v54")
        A(f"ds_write_b32 v63, v62 offset:{4*j}")
    A("s_mov_b64 exec, -1")
    A(f"s_mov_b64 {s2(S_NE)}, s[10:11]")
    A("s_waitcnt lgkmcnt(0)")
    A("s_barrier")
    A("s_branch K2_SETUP")
    L("K2_LASTWIN")
    A(f"s_cmp_gt_u32 s{S_WAVE}, 12")
    A("s_cbranch_scc1 K2_END")
    A(f"ds_read_b128 v[24:27], v{V_PADDR} offset:{AGG}")
    L("K2_EPI")
    srd(SRD_A, OUT_, OUT_+1, N*128)
    A(f"s_mov_b32 s4, 0x{NEGL:x}")
    A(f"s_mul_i32 s5, s2, {BN*128}")
    A("v_lshlrev_b32 v32, 3, v0")
    A(f"v_cmp_gt_u32 vcc, {BN*16}, v0")
    A("s_waitcnt lgkmcnt(0)")
    for i in range(4):
        A(f"v_mul_f32 v{28+i}, s4, v{24+i}")
    for i in range(4):
        A(f"v_exp_f32 v{28+i}, v{28+i}")
    A("s_nop 0")
    for i in range(4):
        A(f"v_add_f32 v{28+i}, 1.0, v{28+i}")
    for i in range(4):
        A(f"v_rcp_f32 v{28+i}, v{28+i}")
    A("s_nop 0")
    for i in range(4):
        A(f"v_mul_f32 v{28+i}, v{24+i}, v{28+i}")
    A("v_cvt_pk_bf16_f32 v24, v28, v29")
    A("v_cvt_pk_bf16_f32 v25, v30, v31")
    A("s_mov_b64 exec, vcc")
    OSC = " " + opt("osc", "none").replace("+", " ").replace("none", "")
    if not flag("xnost"): A(f"buffer_store_dwordx2 v[24:25], v32, {s4(SRD_A)}, s5 offen{OSC}")
    if DBG and flag("endwait"): A("s_waitcnt vmcnt(0)")
    rstamp(9)
    dbg_dump(10, S_WAVE, "K2_DBGX", 17, 4, 0, 2, 1)
    L("K2_END")
    A("s_endpgm")

def desc(name, nv, ns=102):
    acc = (nv + 3) // 4 * 4
    return f""".p2align 6
.amdhsa_kernel {name}
  .amdhsa_next_free_vgpr {nv}
  .amdhsa_next_free_sgpr {ns}
  .amdhsa_accum_offset {acc}
  .amdhsa_group_segment_fixed_size 0
  .amdhsa_kernarg_size 80
  .amdhsa_user_sgpr_count 2
  .amdhsa_user_sgpr_kernarg_segment_ptr 1
  .amdhsa_system_sgpr_workgroup_id_x 1
.end_amdhsa_kernel
"""

hdr = f"""; EGC message passing: k1 = edge binning + source-node table, k2 = per-bucket gather/accumulate
; @launch kernel=k1_kernel grid=({NCH+NG+1},1,1) block=({B1},1,1) lds={K1_LDS}
; @launch kernel=k2_kernel grid=({NB},1,1) block=(1024,1,1) lds={K2_LDS}
.amdgcn_target "amdgcn-amd-amdhsa--gfx950"
.text
"""
k1()
k2()
K3 = flag("k3")
if K3:
    out.append(".globl k3_kernel"); out.append(".p2align 8"); out.append(".type k3_kernel,@function")
    L("k3_kernel")
    A("s_cmp_ge_u32 s2, 8")
    A("s_cbranch_scc1 K3_END")
    rstamp(8)
    A("s_load_dwordx2 s[32:33], s[0:1], 72")
    A("s_mov_b32 s7, 0")
    A("s_waitcnt lgkmcnt(0)")
    rstamp(9)
    dbg_dump(10, 7, "K3_DBGX", 500, 4, 0, 2, 2)
    L("K3_END")
    A("s_endpgm")
    hdr = hdr.replace(".amdgcn_target", "; @launch kernel=k3_kernel grid=(8,1,1) block=(64,1,1) lds=0\n.amdgcn_target")
txt = hdr + "\n".join(out) + "\n" + '.section .rodata,"a"\n' + desc("k1_kernel", 112) + desc("k2_kernel", 128) + (desc("k3_kernel", 16) if K3 else "")
dst = sys.argv[1] if len(sys.argv) > 1 and not sys.argv[1].startswith("--") else "gather_scatter__edge_featured_mpnn_egc__graph.s"
open(dst, "w").write(txt)
print("wrote", dst, len(txt))
```
